```python
import torch

def _softmax(x, axis=-1):
    return torch.softmax(x, dim=axis)
def _gelu(x):
    return torch.nn.functional.gelu(x, approximate="tanh")
def _silu(x):
    return torch.nn.functional.silu(x)
def _sigmoid(x):
    return torch.sigmoid(x)
def _layernorm(x, axis=-1, eps=1e-5):
    m = x.mean(dim=axis, keepdim=True)
    v = x.var(dim=axis, keepdim=True, unbiased=False)
    return (x - m) / torch.sqrt(v + eps)
def _scatter_add(tgt, idx, src, axis=0):
    return tgt.clone().index_add_(axis, idx, src)
def _segment_sum(src, seg, n):
    out = torch.zeros((n,) + src.shape[1:], dtype=src.dtype)
    return out.index_add_(0, seg, src)
def _pad(x, pw):
    flat = tuple(v for pair in reversed(pw) for v in pair)
    return torch.nn.functional.pad(x, flat)

kernel_name = 'standalone__dcn_v2_cross__recsys'

def setup_inputs():

    _w = (lambda a: (lambda t: t.to(torch.bfloat16) if t.is_floating_point() else t)(torch.as_tensor(a)))
    B, F, D, L = 16384, 26, 32, 3
    Din = min(F * D, 1024)
    return {
        "x0": _w((lambda *s: torch.randn(*s, dtype=torch.bfloat16) * 0.05)(B, Din)),
        "ws": _w((lambda *s: torch.randn(*s, dtype=torch.bfloat16) * 0.05)(L, Din, Din)),
        "bs": _w((lambda *s: torch.randn(*s, dtype=torch.bfloat16) * 0.05)(L, Din)),
    }

def reference(x0, ws, bs):
    x = x0
    for l in range(ws.shape[0]):
        x = x0 * (x @ ws[l] + bs[l]) + x
    return x
```

```python
import sys
DIAG = len(sys.argv) > 2 and "diag" in sys.argv[2:]
OPT = set(sys.argv[2:])
def stamp(o, idx, inloop=True):
    if not DIAG: return
    o("s_memtime s[58:59]")
    o("s_memrealtime s[56:57]")
    o("s_waitcnt lgkmcnt(0)")
    if inloop:
        for L in range(3):
            o(f"s_cmp_eq_u32 s26, {L}")
            o(f"s_cselect_b32 s{60+idx+L}, s58, s{60+idx+L}")
            o(f"s_cselect_b32 s{80+idx+L}, s56, s{80+idx+L}")
    else:
        o(f"s_mov_b32 s{60+idx}, s58")
        o(f"s_mov_b32 s{80+idx}, s56")
def stamps_out(o):
    if not DIAG: return
    o("s_memrealtime s[56:57]")
    o("s_waitcnt lgkmcnt(0)")
    o("s_mov_b32 s99, s56")
    o("s_waitcnt vmcnt(0)")
    for i in range(40):
        o(f"v_writelane_b32 v20, s{60+i}, {i}")
    o("v_and_b32 v21, 63, v0")
    o("v_lshlrev_b32 v21, 2, v21")
    o("s_lshl_b32 s56, s2, 2\ns_add_u32 s56, s56, s3\ns_lshl_b32 s56, s56, 8\ns_add_u32 s56, s56, 0x800000")
    o("s_mov_b32 s28, s40\ns_mov_b32 s29, s41\ns_mov_b32 s30, 0x1000000\ns_mov_b32 s31, 0x20000")
    o("buffer_store_dword v20, v21, s[28:31], s56 offen")

D = 832
ROWB = D*2
NKS = 26
NT = 13
WL = D*D*2
WP_WAVE = 3*NKS*NT*1024
WP_TOTAL = 4*WP_WAVE
XBYTES = 16384*ROWB
LDS_X = 0
LDS_BIAS = NKS*4*1024
LDS_TOTAL = LDS_BIAS + 10240

class Asm:
    def __init__(self): self.l = []
    def __call__(self, s):
        for x in s.split("\n"):
            self.l.append(x)
    def text(self): return "\n".join(self.l)

def pack_kernel(o):
    name = "dcn_pack_kernel"
    o(f".globl {name}\n.p2align 8\n.type {name},@function\n{name}:")
    o("s_load_dwordx2 s[4:5], s[0:1], 8")
    o("s_load_dwordx2 s[6:7], s[0:1], 40")
    o("v_lshrrev_b32 v1, 6, v0")
    o("v_and_b32 v2, 63, v0")
    o("v_readfirstlane_b32 s3, v1")
    o("s_nop 3")
    o("s_lshl_b32 s16, s2, 2")
    o("s_add_u32 s16, s16, s3")
    o("s_cmp_ge_u32 s16, 2028")
    o("s_cbranch_scc1 Lpack_end")
    magic = (2**32 + 25)//26
    o(f"s_mov_b32 s17, {magic}")
    o("s_mul_hi_u32 s18, s16, s17")
    o("s_mul_i32 s19, s18, 26")
    o("s_sub_u32 s19, s16, s19")
    o("s_mul_hi_u32 s20, s18, s17")
    o("s_mul_i32 s21, s20, 26")
    o("s_sub_u32 s21, s18, s21")
    o("v_and_b32 v3, 15, v2")
    o("v_lshrrev_b32 v4, 4, v2")
    o(f"v_mul_u32_u24 v5, {8*ROWB}, v4")
    o("v_lshrrev_b32 v6, 2, v3")
    o("v_lshlrev_b32 v6, 4, v6")
    o("v_and_b32 v7, 3, v3")
    o("v_lshlrev_b32 v7, 1, v7")
    o("v_add3_u32 v5, v5, v6, v7")
    o("v_lshlrev_b32 v8, 4, v2")
    o(f"s_mul_i32 s22, s20, {WL}")
    o(f"s_mul_i32 s23, s21, {32*ROWB}")
    o("s_add_u32 s22, s22, s23")
    o("s_lshl_b32 s23, s19, 6")
    o("s_add_u32 s24, s22, s23")
    for jj in range(1, 8):
        o(f"s_add_u32 s{24+jj}, s24, {jj*ROWB}")
    o("s_waitcnt lgkmcnt(0)")
    o(f"s_mov_b32 s8, s4\ns_mov_b32 s9, s5\ns_mov_b32 s10, {3*WL}\ns_mov_b32 s11, 0x20000")
    o(f"s_mov_b32 s12, s6\ns_mov_b32 s13, s7\ns_mov_b32 s14, {WP_TOTAL}\ns_mov_b32 s15, 0x20000")
    for h in range(2):
        for jj in range(8):
            o(f"buffer_load_ushort v{16+h*8+jj}, v5, s[8:11], s{24+jj} offen offset:{8*h}")
    for h in range(2):
        o(f"s_lshl_b32 s32, s19, 1")
        if h: o("s_add_u32 s32, s32, 1")
        m13 = (2**32 + 12)//13
        o(f"s_mov_b32 s33, {m13}")
        o("s_mul_hi_u32 s34, s32, s33")
        o("s_mul_i32 s35, s34, 13")
        o("s_sub_u32 s35, s32, s35")
        o("s_sub_u32 s36, s35, 1")
        o("s_cmp_eq_u32 s35, 0")
        o("s_cselect_b32 s36, 12, s36")
        o("s_and_b32 s37, s34, 1")
        o("s_cmp_eq_u32 s37, 1")
        o("s_cselect_b32 s35, s36, s35")
        o("s_mul_i32 s36, s34, 3")
        o("s_add_u32 s36, s36, s20")
        o("s_mul_i32 s36, s36, 26")
        o("s_add_u32 s36, s36, s21")
        o("s_mul_i32 s36, s36, 13")
        o("s_add_u32 s36, s36, s35")
        o(f"s_lshl_b32 s{40+h}, s36, 10")
    for h in range(2):
        o(f"s_waitcnt vmcnt({8*(1-h)})")
        for q in range(4):
            o(f"v_lshl_or_b32 v{32+h*4+q}, v{16+h*8+2*q+1}, 16, v{16+h*8+2*q}")
        o(f"buffer_store_dwordx4 v[{32+h*4}:{35+h*4}], v8, s[12:15], s{40+h} offen")
    o("Lpack_end:")
    o("s_endpgm")

ACC0 = 48
def acc(t, m, r=0): return ACC0 + (t*4+m)*4 + r
def accr(t, m): b = acc(t, m); return f"v[{b}:{b+3}]"
def X0(p, m): b = (p*4+m)*4; return b
def X0H(m): return 96 + 2*m
WR0 = 104
def WR(slot): b = WR0 + slot*4; return f"a[{b}:{b+3}]"
XF0 = 208
def XF(buf, m): b = XF0 + (buf*4+m)*4; return f"a[{b}:{b+3}]"

V_LANE16 = 2
V_WOFF = 4
V_XA = 11
V_G = 12
V_OWN = 13
V_OWNH = 14
V_BIAS = 15
V_BIASH = 16
T0 = 20

def main_kernel(o):
    name = "standalone__dcn_v2_cross__recsys_kernel"
    o(f".globl {name}\n.p2align 8\n.type {name},@function\n{name}:")
    o("s_cmp_ge_u32 s2, 256")
    o("s_cbranch_scc1 Lmain_end")
    if DIAG:
        o("s_memrealtime s[56:57]")
        o("s_memtime s[58:59]")
        o("s_waitcnt lgkmcnt(0)")
        o("s_mov_b32 s98, s56")
        o("s_mov_b32 s60, s58")
        o("s_mov_b32 s80, s56")
    o("s_load_dwordx2 s[4:5], s[0:1], 0")
    o("s_load_dwordx2 s[6:7], s[0:1], 16")
    o("s_load_dwordx4 s[36:39], s[0:1], 24")
    o("s_load_dwordx2 s[40:41], s[0:1], 40")
    o("v_lshrrev_b32 v1, 6, v0")
    o("v_and_b32 v3, 63, v0")
    o("v_readfirstlane_b32 s3, v1")
    o(f"v_lshlrev_b32 v{V_LANE16}, 4, v3")
    for i in range(7):
        o(f"v_add_u32 v{V_WOFF+i}, {4096*i}, v{V_LANE16}")
    o("v_and_b32 v17, 15, v3")
    o("v_lshrrev_b32 v18, 4, v3")
    o(f"v_mul_u32_u24 v{V_G}, {ROWB}, v17")
    o(f"v_lshl_add_u32 v{V_G}, v18, 4, v{V_G}")
    o("s_mul_i32 s42, s3, 13\ns_add_u32 s42, s42, 1\ns_lshr_b32 s42, s42, 1")
    o("s_lshr_b32 s43, s3, 1\ns_mul_i32 s43, s43, 13\ns_add_u32 s43, s43, 6")
    o("s_and_b32 s44, s3, 1")
    o("s_lshl_b32 s45, s42, 12")
    o(f"v_add_u32 v{V_OWN}, s45, v{V_LANE16}")
    o("s_lshl_b32 s45, s43, 12\ns_lshl_b32 s46, s44, 3\ns_add_u32 s45, s45, s46")
    o(f"v_add_u32 v{V_OWNH}, s45, v{V_LANE16}")
    o(f"s_lshl_b32 s45, s42, 7\ns_add_u32 s45, s45, {LDS_BIAS}")
    o(f"v_lshlrev_b32 v19, 5, v18")
    o(f"v_add_u32 v{V_BIAS}, s45, v19")
    o(f"s_lshl_b32 s45, s43, 7\ns_lshl_b32 s46, s44, 4\ns_add_u32 s45, s45, s46\ns_add_u32 s45, s45, {LDS_BIAS}")
    o(f"v_add_u32 v{V_BIASH}, s45, v19")
    o(f"s_mul_i32 s45, s2, {64*ROWB}")
    o("s_lshl_b32 s46, s42, 6\ns_add_u32 s48, s45, s46")
    o("s_lshl_b32 s46, s43, 6\ns_lshl_b32 s47, s44, 3\ns_add_u32 s46, s46, s47\ns_add_u32 s52, s45, s46")
    for m in range(1, 4):
        o(f"s_add_u32 s{48+m}, s48, {m*16*ROWB}")
        o(f"s_add_u32 s{52+m}, s52, {m*16*ROWB}")
    o("s_waitcnt lgkmcnt(0)")
    o(f"s_mov_b32 s8, s4\ns_mov_b32 s9, s5\ns_mov_b32 s10, {XBYTES}\ns_mov_b32 s11, 0x20000")
    o(f"s_mov_b32 s12, s6\ns_mov_b32 s13, s7\ns_mov_b32 s14, {3*ROWB}\ns_mov_b32 s15, 0x20000")
    o(f"s_mov_b32 s16, s36\ns_mov_b32 s17, s37\ns_mov_b32 s18, {XBYTES}\ns_mov_b32 s19, 0x20000")
    o(f"s_mul_i32 s45, s3, {WP_WAVE}")
    o(f"s_add_u32 s20, s40, s45\ns_addc_u32 s21, s41, 0\ns_mov_b32 s22, {WP_WAVE}\ns_mov_b32 s23, 0x20000")
    o("v_lshlrev_b32 v19, 2, v0")
    for i in range(5):
        o(f"buffer_load_dword v{T0+i}, v19, s[12:15], 0 offen offset:{1024*i if i<4 else 0}" if i < 4 else
          f"v_add_u32 v1, 4096, v19\nbuffer_load_dword v{T0+i}, v1, s[12:15], 0 offen")
    for p in range(6):
        for m in range(4):
            b = X0(p, m)
            o(f"buffer_load_dwordx4 a[{b}:{b+3}], v{V_G}, s[8:11], s{48+m} offen offset:{p*64}")
    for m in range(4):
        b = X0H(m)
        o(f"buffer_load_dwordx2 a[{b}:{b+1}], v{V_G}, s[8:11], s{52+m} offen")
    o("s_mov_b32 s24, 0")
    def wload(slot):
        return f"buffer_load_dwordx4 {WR(slot)}, v{V_WOFF + slot//4}, s[20:23], s24 offen offset:{(slot%4)*1024}"
    for slot in range(26):
        o(wload(slot))
    o(f"s_add_u32 s24, s24, {26*1024}")
    o("v_lshlrev_b32 v19, 3, v0")
    o(f"v_add_u32 v19, {LDS_BIAS}, v19")
    o("s_waitcnt vmcnt(54)")
    o("s_mov_b32 s25, 0xffff0000")
    for i in range(5):
        o(f"v_lshlrev_b32 v{T0+8}, 16, v{T0+i}")
        o(f"v_and_b32 v{T0+9}, s25, v{T0+i}")
        o(f"ds_write_b64 v19, v[{T0+8}:{T0+9}] offset:{2048*i}")
    o("s_waitcnt vmcnt(26)")
    for p in range(6):
        for m in range(4):
            b = X0(p, m)
            o(f"ds_write_b128 v{V_OWN}, a[{b}:{b+3}] offset:{(p*4+m)*1024}")
    for m in range(4):
        b = X0H(m)
        o(f"ds_write_b64 v{V_OWNH}, a[{b}:{b+1}] offset:{m*1024}")
    o("s_waitcnt lgkmcnt(0)")
    stamp(o, 1, False)
    o("s_barrier")
    stamp(o, 2, False)
    o("s_mov_b32 s26, 0")
    o("Llayer:")
    for t in range(12):
        p, h = t//2, t%2
        for m in range(4):
            o(f"ds_read_b128 {accr(t,m)}, v{V_BIAS} offset:{p*128+h*16}")
        if t % 3 == 2: o("s_waitcnt lgkmcnt(0)")
    for m in range(4):
        o(f"ds_read_b128 {accr(12,m)}, v{V_BIASH}")
    o(f"v_mov_b32 v{V_XA}, v{V_LANE16}")
    for m in range(4):
        o(f"ds_read_b128 {XF(0,m)}, v{V_XA} offset:{m*1024}")
    o(f"s_mov_b32 s27, {NKS//2}")
    stamp(o, 3)
    o("Lk:")
    for half in range(2):
        o("s_waitcnt lgkmcnt(0)")
        for t in range(NT):
            slot = half*13 + t
            if t % 2 == 0 and "noW" not in OPT and "halfW" not in OPT:
                o(f"s_waitcnt vmcnt({24 if t < 12 else 25})")
            if t % 2 == 0 and "halfW" in OPT:
                o(f"s_waitcnt vmcnt(12)")
            for m in range(4):
                o(f"v_mfma_f32_16x16x32_bf16 {accr(t,m)}, {WR(slot)}, {XF(half,m)}, {accr(t,m)}")
                if m == 1 and t in (1, 3, 5, 7) and "noX" not in OPT:
                    mm = (t-1)//2
                    o(f"ds_read_b128 {XF(1-half,mm)}, v{V_XA} offset:{((half+1)*4+mm)*1024}")
            if "noW" in OPT: pass
            elif "halfW" in OPT:
                if slot % 2 == 0: o(wload(slot))
            else: o(wload(slot))
        if half == 1:
            pass
    o(f"s_add_u32 s24, s24, {26*1024}")
    o(f"v_add_u32 v{V_XA}, 8192, v{V_XA}")
    o("s_sub_u32 s27, s27, 1")
    o("s_cmp_lg_u32 s27, 0")
    o("s_cbranch_scc1 Lk")
    stamp(o, 6)
    o("s_waitcnt lgkmcnt(0)")
    o("s_nop 7")
    TX = T0
    TU = T0+8
    TA = T0+12
    groups = [(p, m) for p in range(6) for m in range(4)]
    def rd(gi):
        p, m = groups[gi]
        b = TX + (gi % 2)*4
        return f"ds_read_b128 v[{b}:{b+3}], v{V_OWN} offset:{(p*4+m)*1024}"
    o(rd(0))
    for gi, (p, m) in enumerate(groups):
        if gi+1 < len(groups):
            o(rd(gi+1))
        xb = TX + (gi % 2)*4
        for q in range(4):
            o(f"v_accvgpr_read_b32 v{TU+q}, a{X0(p,m)+q}")
        o(f"s_waitcnt lgkmcnt({1 if gi+1 < len(groups) else 0})")
        for q in range(4):
            t = 2*p + q//2
            a0 = acc(t, m, (q % 2)*2); a1 = a0+1
            k = TA + (q % 2)*4
            o(f"v_lshlrev_b32 v{k}, 16, v{TU+q}")
            o(f"v_and_b32 v{k+1}, s25, v{TU+q}")
            o(f"v_lshlrev_b32 v{k+2}, 16, v{xb+q}")
            o(f"v_and_b32 v{k+3}, s25, v{xb+q}")
            o(f"v_fma_f32 v{a0}, v{k}, v{a0}, v{k+2}")
            o(f"v_fma_f32 v{a1}, v{k+1}, v{a1}, v{k+3}")
            o(f"v_cvt_pk_bf16_f32 v{acc(2*p,m,q)}, v{a0}, v{a1}")
    for m in range(4):
        o(f"ds_read_b64 v[{TX+2*m}:{TX+2*m+1}], v{V_OWNH} offset:{m*1024}")
    o("s_waitcnt lgkmcnt(0)")
    for m in range(4):
        for q in range(2):
            o(f"v_accvgpr_read_b32 v{TU+q}, a{X0H(m)+q}")
        for q in range(2):
            a0 = acc(12, m, q*2); a1 = a0+1
            k = TA + q*4
            o(f"v_lshlrev_b32 v{k}, 16, v{TU+q}")
            o(f"v_and_b32 v{k+1}, s25, v{TU+q}")
            o(f"v_lshlrev_b32 v{k+2}, 16, v{TX+2*m+q}")
            o(f"v_and_b32 v{k+3}, s25, v{TX+2*m+q}")
            o(f"v_fma_f32 v{a0}, v{k}, v{a0}, v{k+2}")
            o(f"v_fma_f32 v{a1}, v{k+1}, v{a1}, v{k+3}")
            o(f"v_cvt_pk_bf16_f32 v{acc(12,m,q)}, v{a0}, v{a1}")
    stamp(o, 9)
    o("s_cmp_eq_u32 s26, 2")
    o("s_cbranch_scc1 Lfinal")
    o("s_barrier")
    for p in range(6):
        for m in range(4):
            o(f"ds_write_b128 v{V_OWN}, {accr(2*p,m)} offset:{(p*4+m)*1024}")
    for m in range(4):
        b = acc(12, m)
        o(f"ds_write_b64 v{V_OWNH}, v[{b}:{b+1}] offset:{m*1024}")
    o("s_waitcnt lgkmcnt(0)")
    o("s_barrier")
    stamp(o, 12)
    o("s_add_u32 s26, s26, 1")
    o(f"v_add_u32 v{V_BIAS}, {D*4}, v{V_BIAS}")
    o(f"v_add_u32 v{V_BIASH}, {D*4}, v{V_BIASH}")
    o("s_branch Llayer")
    o("Lfinal:")
    o("s_nop 1")
    for p in range(6):
        for m in range(4):
            o(f"buffer_store_dwordx4 {accr(2*p,m)}, v{V_G}, s[16:19], s{48+m} offen offset:{p*64}")
    for m in range(4):
        b = acc(12, m)
        o(f"buffer_store_dwordx2 v[{b}:{b+1}], v{V_G}, s[16:19], s{52+m} offen")
    if DIAG:
        o("s_waitcnt vmcnt(0)")
        stamp(o, 15, False)
    stamps_out(o)
    o("Lmain_end:")
    o("s_endpgm")

def kd(name, vgpr, acc_off, sgpr=102):
    return f""".p2align 6
.amdhsa_kernel {name}
  .amdhsa_next_free_vgpr {vgpr}
  .amdhsa_next_free_sgpr {sgpr}
  .amdhsa_accum_offset {acc_off}
  .amdhsa_group_segment_fixed_size 0
  .amdhsa_kernarg_size 48
  .amdhsa_user_sgpr_count 2
  .amdhsa_user_sgpr_kernarg_segment_ptr 1
  .amdhsa_system_sgpr_workgroup_id_x 1
.end_amdhsa_kernel"""

o = Asm()
o("; @launch kernel=dcn_pack_kernel grid=(507,1,1) block=(256,1,1) lds=0")
o(f"; @launch kernel=standalone__dcn_v2_cross__recsys_kernel grid=(256,1,1) block=(256,1,1) lds={LDS_TOTAL}")
o('.amdgcn_target "amdgcn-amd-amdhsa--gfx950"')
o(".text")
pack_kernel(o)
main_kernel(o)
o('.section .rodata,"a"')
o(kd("dcn_pack_kernel", 64, 64))
o(kd("standalone__dcn_v2_cross__recsys_kernel", 512, 256))
open(sys.argv[1] if len(sys.argv) > 1 else "v1.s", "w").write(o.text() + "\n")
```

```python
import sys
OPT = set(sys.argv[2:])
DIAG = "diag" in OPT
SEP = "sep" in OPT

D = 832; ROWB = D*2; NKS = 26
WL = D*D*2
FR_LAYER = 338
WP_LAYER = FR_LAYER*1024
WP_WAVE = 3*WP_LAYER
XBYTES = 16384*ROWB
LDS_BIAS = NKS*4*1024
LDS_STAGE = LDS_BIAS + 11264
LDS_TOTAL = LDS_STAGE + 16384
NA, NB = 8, 5
RING = 26
NSHARD = 16
POLL_MAX = 100000
POLL_SLEEP = 4
for _o in OPT:
    if _o.startswith('sleep'): POLL_SLEEP = int(_o[5:])

ACC0 = 48
def acc(t, m, r=0): return ACC0 + (t*4+m)*4 + r
def accr(t, m): b = acc(t, m); return f"v[{b}:{b+3}]"
def X0(p, m): return (p*4+m)*4
def X0H(m): return 96 + 2*m
WR0 = 104
def WR(slot): b = WR0 + slot*4; return f"a[{b}:{b+3}]"
XF0 = 208
def XF(buf, m): b = XF0 + (buf*4+m)*4; return f"a[{b}:{b+3}]"
V_L16 = 1
V_W = 2
V_B = [3, 4, 5, 6]
V_SP = 7
V_RH = 8
V_WB = 9
V_WBH = 10
V_G = 11
V_GH = 12
V_BI = 13
V_BIH = 14
TX = 16
TU = 24
TK = 28
S_W = 3
S_MASK = 25
S_L = 26
S_WB = 20
S_OUT = 48

def inst_of(w, P):
    if P >= 24: return 18 + (P-24)
    u, p = P//6, P % 6
    d = (u - w) & 3
    if p < 4: return 4*d + p
    if d == 0: return 16 + (p-4)
    return 20 + 2*(d-1) + (p-4)
def inst_src(i):
    if i < 16: return ('d', i//4, i % 4)
    if i < 18: return ('d', 0, 4 + (i-16))
    if i < 20: return ('s', i-18, 0)
    j = i - 20
    return ('d', 1 + j//2, 4 + j % 2)
def xaddr(i, m):
    k, a, b = inst_src(i)
    if k == 'd': return V_B[a], b*4096 + m*1024
    return V_SP, a*4096 + m*1024

class It:
    __slots__ = ("k", "t", "id", "needs", "key")
    def __init__(s, k, t=None, id=None, needs=None, key=None):
        s.k, s.t, s.id, s.needs, s.key = k, t, id, needs or [], key
VM = ('G', 'ST'); LG = ('D', 'DW')

def epi_group_full(l, part, p, m, dest):
    gi = (p*4+m)
    xb = TX + (gi % 2)*4
    ops = []
    rid = ('R', l, part, p, m)
    ops.append(It('D', f"ds_read_b128 v[{xb}:{xb+3}], v{V_B[0]} offset:{(p*4+m)*1024}", id=rid))
    body = []
    for q in range(4):
        body.append(It('V', f"v_accvgpr_read_b32 v{TU+q}, a{X0(p,m)+q}"))
    first = True
    for q in range(4):
        t = 2*p + q//2
        a0 = acc(t, m, (q % 2)*2); a1 = a0+1
        k = TK + (q % 2)*4
        body.append(It('V', f"v_lshlrev_b32 v{k}, 16, v{TU+q}"))
        body.append(It('V', f"v_and_b32 v{k+1}, s{S_MASK}, v{TU+q}"))
        it = It('V', f"v_lshlrev_b32 v{k+2}, 16, v{xb+q}")
        if first: it.needs = [rid]; first = False
        body.append(it)
        body.append(It('V', f"v_and_b32 v{k+3}, s{S_MASK}, v{xb+q}"))
        body.append(It('V', f"v_fma_f32 v{a0}, v{k}, v{a0}, v{k+2}"))
        body.append(It('V', f"v_fma_f32 v{a1}, v{k+1}, v{a1}, v{k+3}"))
        body.append(It('V', f"v_cvt_pk_bf16_f32 v{acc(2*p,m,q)}, v{a0}, v{a1}"))
    wid = ('WR', l, part, p, m)
    if dest == 'lds':
        base = V_B[0] if part == 'A' else V_WB
        wr = It('DW', f"ds_write_b128 v{base}, {accr(2*p,m)} offset:{(p*4+m)*1024}", id=wid)
    else:
        wr = It('ST', f"global_store_dwordx4 v{V_G}, {accr(2*p,m)}, s[{S_OUT+2*m}:{S_OUT+2*m+1}] offset:{p*64}", id=wid)
    return ops, body, wr
def epi_group_half(l, m, dest):
    gi = m
    xb = TX + (gi % 2)*4
    rid = ('R', l, 'H', 0, m)
    ops = [It('D', f"ds_read_b64 v[{xb}:{xb+1}], v{V_RH} offset:{m*1024}", id=rid)]
    body = []
    for q in range(2):
        body.append(It('V', f"v_accvgpr_read_b32 v{TU+q}, a{X0H(m)+q}"))
    first = True
    for q in range(2):
        a0 = acc(12, m, q*2); a1 = a0+1
        k = TK + q*4
        body.append(It('V', f"v_lshlrev_b32 v{k}, 16, v{TU+q}"))
        body.append(It('V', f"v_and_b32 v{k+1}, s{S_MASK}, v{TU+q}"))
        it = It('V', f"v_lshlrev_b32 v{k+2}, 16, v{xb+q}")
        if first: it.needs = [rid]; first = False
        body.append(it)
        body.append(It('V', f"v_and_b32 v{k+3}, s{S_MASK}, v{xb+q}"))
        body.append(It('V', f"v_fma_f32 v{a0}, v{k}, v{a0}, v{k+2}"))
        body.append(It('V', f"v_fma_f32 v{a1}, v{k+1}, v{a1}, v{k+3}"))
        body.append(It('V', f"v_cvt_pk_bf16_f32 v{acc(12,m,q)}, v{a0}, v{a1}"))
    wid = ('WR', l, 'H', 0, m)
    b = acc(12, m)
    if dest == 'lds':
        wr = It('DW', f"ds_write_b64 v{V_WBH}, v[{b}:{b+1}] offset:{m*1024}", id=wid)
    else:
        wr = It('ST', f"global_store_dwordx2 v{V_GH}, v[{b}:{b+1}], s[{S_OUT+2*m}:{S_OUT+2*m+1}]", id=wid)
    return ops, body, wr

def epi_stream(l, part, dest):
    groups = []
    if part == 'A':
        for p in range(4):
            for m in range(4): groups.append(epi_group_full(l, 'A', p, m, dest))
    else:
        for p in (4, 5):
            for m in range(4): groups.append(epi_group_full(l, 'B', p, m, dest))
        for m in range(4): groups.append(epi_group_half(l, m, dest))
    return groups

def bias_reads(l, part):
    res = []
    return res

def wload(F_local, Fabs):
    slot = (F_local + RING) % RING
    imm = (F_local % 8)*1024 - 4096
    return It('G', f"global_load_dwordx4 {WR(slot)}, v{V_W}, s[{S_WB}:{S_WB+1}] offset:{imm}" + ("" if SEP else " sc1"), id=('W', Fabs))

def build_pass(name, l, last=False):
    isA = name == 'A'
    tiles = list(range(8)) if isA else [8, 9, 10, 11, 12]
    nt = len(tiles)
    n0 = 0 if isA else 208
    gaps = []
    for i in range(NKS):
        for ti, t in enumerate(tiles):
            n = n0 + i*nt + ti
            slot = n % RING
            for m in range(4):
                c = accr(t, 3) if i == 0 else accr(t, m)
                mf = It('M', f"v_mfma_f32_16x16x32_bf16 {accr(t,m)}, {WR(slot)}, {XF(i%2,m)}, {c}")
                gaps.append(dict(mf=mf, s=[], mem=[], v=[], i=i, ti=ti, m=m, n=n, wait=[]))
    def gidx(i, ti, m): return (i*nt + ti)*4 + m
    NG = len(gaps)
    head_needs = []
    for gi, g in enumerate(gaps):
        needs = []
        if g['m'] == 0:
            needs.append(('W', l*FR_LAYER + g['n']))
            if g['ti'] == 0:
                needs += [('X', l, name, g['i'], mm) for mm in range(4)]
            if g['i'] == 0:
                needs.append(('BI', l, tiles[g['ti']]))
        if needs:
            if gi == 0: head_needs = needs
            else: gaps[gi-1]['wait'] += needs
    for g in gaps:
        if g['m'] == 3:
            n = g['n']; Fabs = l*FR_LAYER + n + RING
            if Fabs < 3*FR_LAYER:
                g['mem'].append(wload(n, Fabs))
                if n % 8 == 7 or n == FR_LAYER-1:
                    inc = 8192 if n % 8 == 7 else (n % 8 + 1)*1024
                    g['v'].append(It('V', f"v_add_u32 v{V_W}, {inc}, v{V_W}"))
    xg = [(0, 0), (0, 1), (0, 2), (1, 0)]
    for i in range(NKS):
        if i+1 < NKS: nl, nn, ni = l, name, i+1
        else:
            if isA: nl, nn, ni = l, 'B', 0
            else:
                if last: continue
                nl, nn, ni = l+1, 'A', 0
        for m in range(4):
            base, off = xaddr(ni, m)
            ti, mm = xg[m]
            gaps[gidx(i, ti, mm)]['mem'].append(
                It('D', f"ds_read_b128 {XF((i+1)%2,m)}, v{base} offset:{off}", id=('X', nl, nn, ni, m)))
    def add_barrier(gi, needs):
        gaps[gi]['wait'] += needs
        gaps[gi]['bar'] = True
    stream = []
    if isA:
        g_b1 = gidx(2, nt-1, 3); g_b2 = gidx(16, nt-1, 3)
        prevA = [('WR', l-1, 'A', p, m) for p in range(4) for m in range(4)]
        add_barrier(g_b1, prevA)
        curB = [('WR', l-1, 'B', p, m) for p in (4, 5) for m in range(4)] + [('WR', l-1, 'H', 0, m) for m in range(4)]
        add_barrier(g_b2, curB)
        groups = epi_stream(l-1, 'B', 'lds')
        wr_earliest = g_b1 + 1
        span = (0, gidx(14, nt-1, 3))
        pre = [It('V', f"v_add_u32 v{V_BI}, {D*4}, v{V_BI}"), It('V', f"v_add_u32 v{V_BIH}, {D*4}, v{V_BIH}")]
        post = []
        for tb, t in enumerate([8, 9, 10, 11]):
            p, h = t//2, t % 2
            post.append(It('D', f"ds_read_b128 {accr(t,3)}, v{V_BI} offset:{p*128+h*16}", id=('BI', l, t)))
        post.append(It('D', f"ds_read_b128 {accr(12,3)}, v{V_BIH}", id=('BI', l, 12)))
        post_earliest = gidx(18, 0, 0)
    else:
        dest = 'glb' if last else 'lds'
        groups = epi_stream(l, 'A', dest)
        if not last:
            g_bm = gidx(14, nt-1, 3)
            add_barrier(g_bm, [])
            wr_earliest = g_bm + 1
            span = (0, gidx(23, nt-1, 3))
        else:
            wr_earliest = 0
            span = (0, gidx(25, nt-1, 3))
        pre = []
        post = []
        if not last:
            pre = [It('V', f"v_mov_b32 v{V_WB}, v{V_B[0]}"), It('V', f"v_mov_b32 v{V_WBH}, v{V_RH}")]
            for t in range(8):
                p, h = t//2, t % 2
                post.append(It('D', f"ds_read_b128 {accr(t,3)}, v{V_BI} offset:{D*4+p*128+h*16}", id=('BI', l+1, t)))
        post_earliest = gidx(25, 0, 0) if not last else 0
    ng = len(groups)
    g0, g1 = span
    lin = [(it, 0) for it in pre]
    pend_w = []
    lin.append((groups[0][0][0], g0))
    for k, (rd, body, wr) in enumerate(groups):
        e = g0 + (g1-g0)*k//ng
        if k+1 < ng: lin.append((groups[k+1][0][0], e))
        for it in body: lin.append((it, e))
        lin.append((wr, e, 'w'))
    qi = 0
    delayed = []
    post_q = list(post)
    for gi, g in enumerate(gaps):
        def nvec(): return len(g['mem']) + len(g['v'])
        heavy = False
        if delayed and gi >= wr_earliest and nvec() == 0 and not g.get('bar'):
            g['mem'].append(delayed.pop(0)); heavy = True
        if heavy: continue
        while qi < len(lin) and nvec() < 2:
            e = lin[qi]; it = e[0]
            if gi < e[1]: break
            if len(e) == 3:
                if it.k == 'DW' and (gi < wr_earliest or delayed):
                    delayed.append(it); qi += 1; continue
                if nvec() == 0 and not g.get('bar'):
                    g['mem'].append(it); qi += 1
                break
            if it.k == 'D':
                if len(g['v']) == 0:
                    g['mem'].append(it); qi += 1; continue
                break
            if it.needs:
                g['wait'] += it.needs
            g['v'].append(it); qi += 1
        if qi >= len(lin) and not delayed and post_q and gi >= post_earliest and len(g['v']) == 0 and nvec() < 2:
            g['mem'].append(post_q.pop(0))
    assert qi == len(lin), (name, l, "stream not fully placed", qi, len(lin))
    assert not delayed and not post_q, (name, l, len(delayed), len(post_q))
    return gaps, head_needs

def gaps_to_items(gaps, tag):
    items = []
    for gi, g in enumerate(gaps):
        items.append(g['mf'])
        if g['wait'] or g.get('bar'):
            items.append(It('W', needs=list(g['wait']), key=(tag, gi)))
        if g.get('bar'): items.append(It('B', "s_barrier"))
        items += g['mem']
        items += g['v']
    return items

class Resolver:
    def __init__(s):
        s.vm = []; s.lg = []; s.vmdone = -1; s.lgdone = -1
        s.pos = {}
        s.waits = {}
    def run(s, items):
        for it in items:
            if it.k in VM:
                s.pos[it.id] = ('vm', len(s.vm)); s.vm.append(it.id)
            elif it.k in LG:
                s.pos[it.id] = ('lg', len(s.lg)); s.lg.append(it.id)
            elif it.k == 'W':
                nv = nl = None
                for nd in it.needs:
                    if nd not in s.pos:
                        assert nd[0] in ('WR',) and nd[1] < 0, nd
                        continue
                    c, p = s.pos[nd]
                    if c == 'vm':
                        if p > s.vmdone:
                            n = len(s.vm)-1-p; nv = n if nv is None else min(nv, n)
                    else:
                        if p > s.lgdone:
                            n = len(s.lg)-1-p; nl = n if nl is None else min(nl, n)
                if nv is not None: nv = min(nv, 63); s.vmdone = max(s.vmdone, len(s.vm)-1-nv)
                if nl is not None: nl = min(nl, 15); s.lgdone = max(s.lgdone, len(s.lg)-1-nl)
                old = s.waits.get(it.key, [None, None])
                s.waits[it.key] = [nv if old[0] is None else (old[0] if nv is None else min(old[0], nv)),
                                   nl if old[1] is None else (old[1] if nl is None else min(old[1], nl))]
    def text(s, items):
        out = []
        for it in items:
            if it.k == 'W':
                nv, nl = s.waits[it.key]
                parts = []
                if nv is not None: parts.append(f"vmcnt({nv})")
                if nl is not None: parts.append(f"lgkmcnt({nl})")
                if parts: out.append("s_waitcnt " + " ".join(parts))
            elif it.t is not None:
                out.append(it.t)
        return out

def stamp_txt(idx):
    if not DIAG: return []
    o = ["s_memtime s[58:59]", "s_memrealtime s[56:57]", "s_waitcnt lgkmcnt(0)"]
    if isinstance(idx, tuple):
        for L in range(3):
            o += [f"s_cmp_eq_u32 s{S_L}, {L}", f"s_cselect_b32 s{60+idx[0]+L}, s58, s{60+idx[0]+L}",
                  f"s_cselect_b32 s{80+idx[0]+L}, s56, s{80+idx[0]+L}"]
    else:
        o += [f"s_mov_b32 s{60+idx}, s58", f"s_mov_b32 s{80+idx}, s56"]
    return o

def table():
    ent = []
    for Pk in range(26):
        for Bk in range(13):
            for k in range(4):
                a, h = k >> 1, k & 1
                Pn = 2*Bk + a
                if Pn < 24: w, p = Pn//6, Pn % 6; t = 2*p + h
                else: w = 2*(Pn-24) + h; t = 12
                i = inst_of(w, Pk)
                if t < 8: pos = i*8 + t
                else: pos = 208 + i*5 + (t-8)
                ent.append(w*WP_WAVE + pos*1024)
    return ent

def prologue(o):
    name = "standalone__dcn_v2_cross__recsys_kernel"
    o(f".globl {name}\n.p2align 8\n.type {name},@function\n{name}:")
    o("s_cmp_ge_u32 s2, 256")
    o("s_cbranch_scc1 Lend")
    if DIAG:
        o("s_memrealtime s[56:57]\ns_memtime s[58:59]\ns_waitcnt lgkmcnt(0)\ns_mov_b32 s98, s56\ns_mov_b32 s60, s58\ns_mov_b32 s80, s56")
    o("s_load_dwordx4 s[4:7], s[0:1], 0")
    o("s_load_dwordx4 s[8:11], s[0:1], 16")
    o("s_load_dwordx4 s[12:15], s[0:1], 32")
    o("v_lshrrev_b32 v40, 6, v0")
    o("v_and_b32 v41, 63, v0")
    o(f"v_readfirstlane_b32 s{S_W}, v40")
    o(f"v_lshlrev_b32 v{V_L16}, 4, v41")
    o("v_and_b32 v42, 15, v41")
    o("v_lshrrev_b32 v43, 4, v41")
    o(f"v_mul_u32_u24 v{V_G}, {ROWB}, v42")
    o(f"v_lshl_add_u32 v{V_G}, v43, 4, v{V_G}")
    o(f"s_mov_b32 s{S_MASK}, 0xffff0000")
    for d in range(4):
        o(f"s_add_u32 s30, s{S_W}, {d}\ns_and_b32 s30, s30, 3\ns_mul_i32 s30, s30, {6*4096}")
        o(f"v_add_u32 v{V_B[d]}, s30, v{V_L16}")
    o(f"v_add_u32 v{V_SP}, {24*4096}, v{V_L16}")
    o(f"s_lshr_b32 s30, s{S_W}, 1\ns_and_b32 s31, s{S_W}, 1")
    o("s_lshl_b32 s32, s30, 12\ns_lshl_b32 s33, s31, 3\ns_add_u32 s32, s32, s33")
    o(f"v_add_u32 v{V_RH}, s32, v{V_SP}")
    o(f"v_add_u32 v{V_WB}, {LDS_STAGE-16384}, v{V_L16}")
    o(f"v_add_u32 v{V_WBH}, {LDS_STAGE+8192}, v{V_L16}")
    o(f"v_lshlrev_b32 v44, 5, v43")
    o(f"s_mul_i32 s32, s{S_W}, 768\ns_add_u32 s32, s32, {LDS_BIAS-D*4}")
    o(f"v_add_u32 v{V_BI}, s32, v44")
    o(f"s_lshl_b32 s32, s30, 7\ns_lshl_b32 s33, s31, 4\ns_add_u32 s32, s32, s33\ns_add_u32 s32, s32, {LDS_BIAS-D*4+24*128}")
    o(f"v_add_u32 v{V_BIH}, s32, v44")
    o(f"s_lshl_b32 s32, s30, 6\ns_lshl_b32 s33, s31, 3\ns_add_u32 s32, s32, s33\ns_add_u32 s32, s32, {24*64}")
    o(f"s_mul_i32 s33, s{S_W}, 384\ns_sub_u32 s32, s32, s33")
    o(f"v_add_u32 v{V_GH}, s32, v{V_G}")
    o(f"v_add_u32 v{V_W}, {4096 + RING*1024}, v{V_L16}")
    o(f"s_mov_b32 s{S_L}, 0")
    o("s_getpc_b64 s[34:35]")
    o("Lpc:")
    o("s_add_u32 s34, s34, Ltable-Lpc\ns_addc_u32 s35, s35, 0")
    o("s_waitcnt lgkmcnt(0)")
    o(f"s_mul_i32 s30, s{S_W}, {WP_WAVE}")
    o(f"s_add_u32 s{S_WB}, s14, s30\ns_addc_u32 s{S_WB+1}, s15, 0")
    if SEP:
        o(f"s_mul_i32 s30, s2, {64*ROWB}\ns_mul_i32 s31, s{S_W}, 384\ns_add_u32 s30, s30, s31")
        o(f"s_add_u32 s{S_OUT}, s10, s30\ns_addc_u32 s{S_OUT+1}, s11, 0")
        for m in range(1, 4):
            o(f"s_add_u32 s{S_OUT+2*m}, s{S_OUT}, {m*16*ROWB}\ns_addc_u32 s{S_OUT+2*m+1}, s{S_OUT+1}, 0")
        o(f"v_add_u32 v40, 4096, v{V_L16}")
        for F in range(RING):
            o(f"global_load_dwordx4 {WR(F)}, v40, s[{S_WB}:{S_WB+1}] offset:{(F%8)*1024-4096}")
            if F % 8 == 7: o("v_add_u32 v40, 8192, v40")
        o(f"s_mul_i32 s30, s2, {64*ROWB}\ns_mul_i32 s31, s{S_W}, {16*ROWB}\ns_add_u32 s30, s30, s31")
        o("s_add_u32 s22, s4, s30\ns_addc_u32 s23, s5, 0")
        o(f"s_lshl_b32 s31, s{S_W}, 10")
        for P in range(26):
            o(f"s_add_u32 m0, s31, {P*4096 - P*64}\ns_nop 0")
            o(f"global_load_lds_dwordx4 v{V_G}, s[22:23] offset:{P*64}")
        o("v_lshlrev_b32 v40, 2, v0")
        o(f"s_mov_b32 s40, s8\ns_mov_b32 s41, s9\ns_mov_b32 s42, {3*ROWB}\ns_mov_b32 s43, 0x20000")
        for i in range(5):
            if i < 4: o(f"buffer_load_dword v{16+i}, v40, s[40:43], 0 offen offset:{i*1024}")
            else: o(f"v_add_u32 v42, 4096, v40\nbuffer_load_dword v{16+i}, v42, s[40:43], 0 offen")
        if "nocodepf" not in OPT:
            o("s_lshr_b32 s30, s2, 3\ns_and_b32 s30, s30, 31\ns_lshl_b32 s30, s30, 2")
            o(f"s_add_u32 s30, s30, s{S_W}\ns_lshl_b32 s30, s30, 9")
            o(f"s_min_u32 s30, s30, Ltable-Lloop")
            o(f"s_getpc_b64 s[44:45]\nLpc2:\ns_add_u32 s44, s44, Lloop-Lpc2\ns_addc_u32 s45, s45, 0")
            o(f"v_lshrrev_b32 v42, 1, v{V_L16}\nv_add_u32 v42, s30, v42")
            o("global_load_dwordx2 v[36:37], v42, s[44:45]")
        o("v_lshlrev_b32 v40, 1, v40")
        o(f"v_add_u32 v40, {LDS_BIAS}, v40")
        for s_ in stamp_txt(12): o(s_)
        o("s_waitcnt vmcnt(0)")
        for s_ in stamp_txt(13): o(s_)
        for i in range(5):
            o(f"v_lshlrev_b32 v44, 16, v{16+i}\nv_and_b32 v45, s{S_MASK}, v{16+i}")
            o(f"ds_write_b64 v40, v[44:45] offset:{i*2048}")
        o("s_waitcnt lgkmcnt(0)")
        o("s_barrier")
        return
    o(f"s_cmp_ge_u32 s{S_W}, 1")
    o("s_cbranch_scc1 Lx0load")
    o(f"s_lshl_b32 s36, s2, 2")
    o("s_mov_b32 s38, 0")
    o("v_lshrrev_b32 v40, 3, v41\nv_and_b32 v42, 7, v41")
    o(f"v_mul_u32_u24 v30, {ROWB}, v40\nv_lshl_add_u32 v30, v42, 4, v30")
    for q in range(1, 4):
        o(f"v_add_u32 v{30+q}, {q*8*ROWB}, v30")
    o("v_bfe_u32 v40, v41, 2, 2\nv_and_b32 v42, 3, v41")
    o("v_lshl_add_u32 v40, v43, 3, v40")
    o("v_lshlrev_b32 v40, 7, v40\nv_lshl_add_u32 v34, v42, 4, v40")
    o(f"v_add_u32 v34, {LDS_STAGE}, v34")
    o("Lpack:")
    NB_ = 4
    for blk in range(NB_):
        o(f"s_add_u32 s40, s36, {blk}\ns_min_u32 s40, s40, 1013")
        o(f"s_mov_b32 s41, {(2**32+337)//338}\ns_mul_hi_u32 s42, s40, s41")
        o("s_mul_i32 s41, s42, 338\ns_sub_u32 s40, s40, s41")
        o(f"s_mov_b32 s41, {(2**32+12)//13}\ns_mul_hi_u32 s43, s40, s41")
        o("s_mul_i32 s41, s43, 13\ns_sub_u32 s41, s40, s41")
        o("s_lshl_b32 s24, s40, 4")
        o(f"s_load_dwordx4 s[{TBL[blk]}:{TBL[blk]+3}], s[34:35], s24")
        o(f"s_mul_i32 s{LOFF[blk]}, s42, {WP_LAYER}")
        o(f"s_mul_i32 s40, s42, {WL}\ns_mul_i32 s43, s43, {32*ROWB}\ns_add_u32 s40, s40, s43\ns_lshl_b32 s41, s41, 7\ns_add_u32 s40, s40, s41")
        o("s_add_u32 s22, s6, s40\ns_addc_u32 s23, s7, 0")
        for q in range(4):
            o(f"s_mov_b32 m0, {LDS_STAGE + blk*4096+q*1024}\ns_nop 0")
            o(f"global_load_lds_dwordx4 v{30+q}, s[22:23]")
    for s_ in stamp_txt(12): o(s_)
    def trs(blk):
        for k in range(4):
            a, h = k >> 1, k & 1
            b = TRD + (blk*4+k)*4
            off = blk*4096 + 64*a + 8*h
            o(f"ds_read_b64_tr_b16 v[{b}:{b+1}], v34 offset:{off}")
            o(f"ds_read_b64_tr_b16 v[{b+2}:{b+3}], v34 offset:{off+512}")
    for blk in range(NB_):
        o(f"s_waitcnt vmcnt({4*(NB_-1-blk)})")
        trs(blk)
    for s_ in stamp_txt(13): o(s_)
    o("s_waitcnt lgkmcnt(0)")
    for blk in range(NB_):
        for k in range(4):
            o(f"s_add_u32 s40, s{TBL[blk]+k}, s{LOFF[blk]}")
            o(f"v_add_u32 v{35+k}, s40, v{V_L16}")
        for k in range(4):
            b = TRD + (blk*4+k)*4
            o(f"global_store_dwordx4 v{35+k}, v[{b}:{b+3}], s[14:15]" + ("" if "plainst" in OPT else " sc0 sc1"))
    for s_ in stamp_txt(14): o(s_)
    o("s_waitcnt vmcnt(0)")
    for s_ in stamp_txt(15): o(s_)
    o("s_cmp_eq_u32 s38, 0\ns_cbranch_scc1 Lpack_done")
    o("s_add_u32 s36, s36, 4\ns_cmp_lt_u32 s36, 1014\ns_cbranch_scc1 Lpack")
    o("s_branch Lsync_done")
    o("Lpack_done:")
    o(f"s_and_b32 s40, s2, {NSHARD-1}\ns_lshl_b32 s40, s40, 4")
    o("v_mov_b32 v35, s40\nv_mov_b32 v36, 1")
    o("s_mov_b64 s[42:43], exec\ns_mov_b64 exec, 1")
    o("global_atomic_add v35, v36, s[12:13] sc1")
    o("s_mov_b64 exec, s[42:43]")
    o(f"v_and_b32 v35, {NSHARD-1}, v41\nv_lshlrev_b32 v35, 4, v35")
    o(f"s_mov_b32 s40, 0\ns_mov_b32 s41, {256//NSHARD}")
    if "nopoll" in OPT: o("s_branch Lsync_done")
    o("Lpoll:")
    o(f"s_sleep {POLL_SLEEP}")
    o("global_load_dword v36, v35, s[12:13] sc1")
    o("s_add_u32 s40, s40, 1")
    o("s_waitcnt vmcnt(0)")
    o("v_cmp_gt_u32 vcc, s41, v36")
    o("s_nop 4")
    o("s_cmp_eq_u64 vcc, 0")
    o("s_cbranch_scc1 Lsync_done")
    o(f"s_cmp_lt_u32 s40, {POLL_MAX if 'forcefb' not in OPT else 1}")
    o("s_cbranch_scc1 Lpoll")
    o("s_mov_b32 s38, 1\ns_mov_b32 s36, 0\ns_branch Lpack")
    o("Lx0load:")
    o(f"s_mul_i32 s30, s2, {64*ROWB}")
    o("s_add_u32 s22, s4, s30\ns_addc_u32 s23, s5, 0")
    o(f"s_add_u32 s28, s22, {16*ROWB}\ns_addc_u32 s29, s23, 0")
    o(f"s_add_u32 s36, s22, {32*ROWB}\ns_addc_u32 s37, s23, 0")
    o(f"s_add_u32 s38, s22, {48*ROWB}\ns_addc_u32 s39, s23, 0")
    XB = [22, 28, 36, 38]
    o(f"s_sub_u32 s31, s{S_W}, 1\ns_mul_i32 s31, s31, 9")
    o("s_lshl_b32 s33, s31, 6")
    o(f"v_add_u32 v45, s33, v{V_G}")
    o("s_lshl_b32 s31, s31, 12")
    NP = 9
    for P in range(NP):
        if P == 8:
            o(f"s_cmp_eq_u32 s{S_W}, 3\ns_cbranch_scc1 Lx0skip")
        for mm in range(4):
            o(f"s_add_u32 m0, s31, {(P*4+mm)*1024 - P*64}\ns_nop 0")
            o(f"global_load_lds_dwordx4 v45, s[{XB[mm]}:{XB[mm]+1}] offset:{P*64}")
    o("Lx0skip:")
    o("v_subrev_u32 v40, 64, v0\nv_lshlrev_b32 v40, 2, v40")
    o(f"s_mov_b32 s40, s8\ns_mov_b32 s41, s9\ns_mov_b32 s42, {3*ROWB}\ns_mov_b32 s43, 0x20000")
    for i in range(7):
        if i*768 < 4096: o(f"buffer_load_dword v{16+i}, v40, s[40:43], 0 offen offset:{i*768}")
        else: o(f"v_add_u32 v42, {i*768}, v40\nbuffer_load_dword v{16+i}, v42, s[40:43], 0 offen")
    if "nocodepf" not in OPT:
        o("s_lshr_b32 s30, s2, 3\ns_and_b32 s30, s30, 31\ns_mul_i32 s30, s30, 3")
        o(f"s_sub_u32 s33, s{S_W}, 1\ns_add_u32 s30, s30, s33\ns_lshl_b32 s30, s30, 10")
        o(f"s_min_u32 s30, s30, Ltable-Lloop")
        o(f"s_getpc_b64 s[44:45]\nLpc2:\ns_add_u32 s44, s44, Lloop-Lpc2\ns_addc_u32 s45, s45, 0")
        o(f"v_add_u32 v42, s30, v{V_L16}")
        o("global_load_dwordx4 v[36:39], v42, s[44:45]")
    o("v_lshlrev_b32 v40, 1, v40")
    o(f"v_add_u32 v40, {LDS_BIAS}, v40")
    for s_ in stamp_txt(12): o(s_)
    o(f"s_waitcnt vmcnt(0)")
    for s_ in stamp_txt(13): o(s_)
    for i in range(7):
        o(f"v_lshlrev_b32 v44, 16, v{16+i}\nv_and_b32 v45, s{S_MASK}, v{16+i}")
        o(f"ds_write_b64 v40, v[44:45] offset:{i*1536}")
    o("s_waitcnt lgkmcnt(0)")
    o("Lsync_done:")
    for s_ in stamp_txt(17): o(s_)
    o("s_barrier")
    o(f"s_mul_i32 s30, s2, {64*ROWB}\ns_mul_i32 s31, s{S_W}, 384\ns_add_u32 s30, s30, s31")
    o(f"s_add_u32 s{S_OUT}, s10, s30\ns_addc_u32 s{S_OUT+1}, s11, 0")
    for m in range(1, 4):
        o(f"s_add_u32 s{S_OUT+2*m}, s{S_OUT}, {m*16*ROWB}\ns_addc_u32 s{S_OUT+2*m+1}, s{S_OUT+1}, 0")

def pack_kernel(o):
    name = "dcn_pack_kernel"
    o(f".globl {name}\n.p2align 8\n.type {name},@function\n{name}:")
    o("s_load_dwordx2 s[6:7], s[0:1], 8")
    o("s_load_dwordx2 s[14:15], s[0:1], 40")
    o("v_lshrrev_b32 v40, 6, v0\nv_and_b32 v41, 63, v0")
    o("v_readfirstlane_b32 s3, v40")
    o("v_lshlrev_b32 v1, 4, v41")
    o("v_lshrrev_b32 v43, 4, v41")
    o("s_getpc_b64 s[34:35]\nLpcp:\ns_add_u32 s34, s34, Ltable-Lpcp\ns_addc_u32 s35, s35, 0")
    o("s_lshl_b32 s40, s2, 2\ns_add_u32 s40, s40, s3")
    o("s_cmp_ge_u32 s40, 1014\ns_cbranch_scc1 Lpk_end")
    o(f"s_mov_b32 s41, {(2**32+337)//338}\ns_mul_hi_u32 s42, s40, s41")
    o("s_mul_i32 s41, s42, 338\ns_sub_u32 s40, s40, s41")
    o(f"s_mov_b32 s41, {(2**32+12)//13}\ns_mul_hi_u32 s43, s40, s41")
    o("s_mul_i32 s41, s43, 13\ns_sub_u32 s41, s40, s41")
    o("s_lshl_b32 s24, s40, 4")
    o(f"s_load_dwordx4 s[16:19], s[34:35], s24")
    o(f"s_mul_i32 s46, s42, {WP_LAYER}")
    o(f"s_mul_i32 s40, s42, {WL}\ns_mul_i32 s43, s43, {32*ROWB}\ns_add_u32 s40, s40, s43\ns_lshl_b32 s41, s41, 7\ns_add_u32 s40, s40, s41")
    o("v_lshrrev_b32 v40, 3, v41\nv_and_b32 v42, 7, v41")
    o(f"v_mul_u32_u24 v30, {ROWB}, v40\nv_lshl_add_u32 v30, v42, 4, v30")
    for q in range(1, 4):
        o(f"v_add_u32 v{30+q}, {q*8*ROWB}, v30")
    o("v_bfe_u32 v40, v41, 2, 2\nv_and_b32 v42, 3, v41")
    o("v_lshl_add_u32 v40, v43, 3, v40")
    o("v_lshlrev_b32 v40, 7, v40\nv_lshl_add_u32 v34, v42, 4, v40")
    o("s_lshl_b32 s39, s3, 12")
    o("v_add_u32 v34, s39, v34")
    o("s_waitcnt lgkmcnt(0)")
    o("s_add_u32 s22, s6, s40\ns_addc_u32 s23, s7, 0")
    for q in range(4):
        o(f"s_add_u32 m0, s39, {q*1024}\ns_nop 0")
        o(f"global_load_lds_dwordx4 v{30+q}, s[22:23]")
    for k in range(4):
        o(f"s_add_u32 s40, s{16+k}, s46")
        o(f"v_add_u32 v{35+k}, s40, v1")
    o("s_waitcnt vmcnt(0)")
    for k in range(4):
        a, h = k >> 1, k & 1
        b = 8 + k*4
        off = 64*a + 8*h
        o(f"ds_read_b64_tr_b16 v[{b}:{b+1}], v34 offset:{off}")
        o(f"ds_read_b64_tr_b16 v[{b+2}:{b+3}], v34 offset:{off+512}")
    for k in range(4):
        b = 8 + k*4
        o(f"s_waitcnt lgkmcnt({2*(3-k)})")
        o(f"global_store_dwordx4 v{35+k}, v[{b}:{b+3}], s[14:15]")
    o("Lpk_end:\ns_endpgm")

def prologue_sep_tail(o):
    pass

TBL = [16, 28, 44, 48]
LOFF = [52, 53, 54, 55]
TRD = 48


class Asm:
    def __init__(self): self.l = []
    def __call__(self, s):
        for x in s.split("\n"): self.l.append(x)
    def text(self): return "\n".join(self.l)

def pro_items():
    items = []
    if not SEP: items.append(It('V', f"v_add_u32 v40, 4096, v{V_L16}"))
    for F in range(RING):
        if SEP:
            items.append(It('G', None, id=('W', F))); continue
        items.append(It('G', f"global_load_dwordx4 {WR(F)}, v40, s[{S_WB}:{S_WB+1}] offset:{(F%8)*1024-4096} sc1", id=('W', F)))
        if F % 8 == 7: items.append(It('V', "v_add_u32 v40, 8192, v40"))
    for m in range(4):
        base, off = xaddr(0, m)
        items.append(It('D', f"ds_read_b128 {XF(0,m)}, v{base} offset:{off}", id=('X', 0, 'A', 0, m)))
    for t in range(8):
        p, h = t//2, t % 2
        items.append(It('D', f"ds_read_b128 {accr(t,3)}, v{V_BI} offset:{D*4+p*128+h*16}", id=('BI', 0, t)))
    for p in range(6):
        for m in range(4):
            b = X0(p, m)
            items.append(It('D', f"ds_read_b128 a[{b}:{b+3}], v{V_B[0]} offset:{(p*4+m)*1024}", id=('X0', p, m)))
    for m in range(4):
        b = X0H(m)
        items.append(It('D', f"ds_read_b64 a[{b}:{b+1}], v{V_RH} offset:{m*1024}", id=('X0H', m)))
    items.append(It('W', needs=[('X0H', 3)], key=('PRO', 0)))
    return items

def e_items():
    groups = epi_stream(2, 'B', 'glb')
    items = [It('S', "s_nop 7")]
    items.append(groups[0][0][0])
    for k, (rd, body, wr) in enumerate(groups):
        if k+1 < len(groups): items.append(groups[k+1][0][0])
        for it in body:
            if it.needs: items.append(It('W', needs=it.needs, key=('E', k)))
            items.append(it)
        items.append(wr)
    return items

def verify(seq):
    idx = 0; wr = {}; bars = []; xr = []
    lastread = {}
    for bn, items in seq:
        for it in items:
            idx += 1
            if it.k == 'B': bars.append(idx)
            if it.k == 'DW': wr[it.id] = idx
            if it.k == 'D' and it.id[0] == 'X': xr.append((idx, it.id))
    import bisect
    def frag_of(i):
        k, a, b = inst_src(i)
        return (k, a, b)
    for ridx, (_, l, nm, i, m) in xr:
        k, a, b = inst_src(i)
        if l == 0: continue
        if k == 'd':
            part = 'A' if b < 4 else 'B'
            wid = ('WR', l-1, part, b, m)
            own = (a == 0)
        else:
            wid = ('WR', l-1, 'H', 0, m); own = False
        assert wid in wr, (wid,)
        w = wr[wid]
        assert w < ridx, ("RAW own order", wid, l, nm, i, m)
        if not own:
            j = bisect.bisect(bars, w)
            assert j < len(bars) and bars[j] < ridx, ("RAW barrier", wid, l, nm, i, m)
    for wid, w in wr.items():
        _, lw, part, p, m = wid
        if lw < 0: continue
        last = 0
        for ridx, (_, l, nm, i, mm) in xr:
            if l != lw or mm != m: continue
            k, a, b = inst_src(i)
            same = (k == 'd' and part in 'AB' and b == p) or (k == 's' and part == 'H')
            if same: last = max(last, ridx)
        j = bisect.bisect(bars, last)
        assert j < len(bars) and bars[j] < w, ("WAR barrier", wid, last, w)
    print("verify ok: barriers", len(bars), file=sys.stderr)

def main():
    o = Asm()
    if SEP:
        o("; @launch kernel=dcn_pack_kernel grid=(254,1,1) block=(256,1,1) lds=16384")
        o(f"; @launch kernel=standalone__dcn_v2_cross__recsys_kernel grid=(256,1,1) block=(256,1,1) lds={LDS_TOTAL}")
    else:
        o(f"; @launch grid=(256,1,1) block=(256,1,1) lds={LDS_TOTAL}")
    o('.amdgcn_target "amdgcn-amd-amdhsa--gfx950"')
    o(".text")
    if SEP: pack_kernel(o)
    prologue(o)
    seq = [('PRO', pro_items())]
    def blk(tag, name, l, last=False):
        gaps, head = build_pass(name, l, last)
        return [It('W', needs=head, key=(tag, 'head'))] + gaps_to_items(gaps, tag)
    seq.append(('PA', blk('PA', 'A', 0)))
    seq.append(('PB', blk('PB', 'B', 0)))
    seq.append(('PA', blk('PA', 'A', 1)))
    seq.append(('PB', blk('PB', 'B', 1)))
    seq.append(('PA', blk('PA', 'A', 2)))
    seq.append(('PBL', blk('PBL', 'B', 2, True)))
    seq.append(('E', e_items()))
    R = Resolver()
    for bn, items in seq: R.run(items)
    verify(seq)
    def emit(items):
        for s in R.text(items): o(s)
    for s in stamp_txt(1): o(s)
    emit(seq[0][1])
    for s in stamp_txt(2): o(s)
    o(".p2align 6")
    o("Lloop:")
    for s in stamp_txt((3,)): o(s)
    emit(seq[1][1])
    for s in stamp_txt((6,)): o(s)
    o(f"s_cmp_eq_u32 s{S_L}, 2")
    o("s_cbranch_scc1 Llast")
    emit(seq[2][1])
    o(f"s_add_u32 s{S_L}, s{S_L}, 1")
    o("s_branch Lloop")
    o("Llast:")
    emit(seq[6][1])
    for s in stamp_txt(9): o(s)
    emit(seq[7][1])
    if DIAG:
        for s in stamp_txt(10): o(s)
        o("s_waitcnt vmcnt(0)")
        for s in stamp_txt(11): o(s)
        o("s_memrealtime s[56:57]\ns_waitcnt lgkmcnt(0)\ns_mov_b32 s99, s56")
        for i in range(40):
            o(f"v_writelane_b32 v20, s{60+i}, {i}")
        o("v_and_b32 v21, 63, v0\nv_lshlrev_b32 v21, 2, v21")
        o(f"s_lshl_b32 s56, s2, 2\ns_add_u32 s56, s56, s{S_W}\ns_lshl_b32 s56, s56, 8\ns_add_u32 s56, s56, 0x800000")
        o("v_add_u32 v21, s56, v21")
        o("global_store_dword v21, v20, s[14:15]")
    o("Lend:")
    o("s_endpgm")
    o(".p2align 6")
    o(".type Ltable,@object")
    o("Ltable:")
    tb = table()
    for i in range(0, len(tb), 8):
        o(".long " + ", ".join(str(x) for x in tb[i:i+8]))
    o(".size Ltable, .-Ltable")
    o('.section .rodata,"a"')
    o(f""".p2align 6
.amdhsa_kernel standalone__dcn_v2_cross__recsys_kernel
  .amdhsa_next_free_vgpr 512
  .amdhsa_next_free_sgpr 102
  .amdhsa_accum_offset 256
  .amdhsa_group_segment_fixed_size 0
  .amdhsa_kernarg_size 48
  .amdhsa_user_sgpr_count 2
  .amdhsa_user_sgpr_kernarg_segment_ptr 1
  .amdhsa_system_sgpr_workgroup_id_x 1
.end_amdhsa_kernel""")
    if SEP:
        o(f""".p2align 6
.amdhsa_kernel dcn_pack_kernel
  .amdhsa_next_free_vgpr 48
  .amdhsa_next_free_sgpr 64
  .amdhsa_accum_offset 48
  .amdhsa_group_segment_fixed_size 0
  .amdhsa_kernarg_size 48
  .amdhsa_user_sgpr_count 2
  .amdhsa_user_sgpr_kernarg_segment_ptr 1
  .amdhsa_system_sgpr_workgroup_id_x 1
.end_amdhsa_kernel""")
    open(sys.argv[1], "w").write(o.text() + "\n")
main()
```

```python
import sys, bisect
OPT = set(sys.argv[2:])
DIAG = "diag" in OPT
def optval(name, default):
    for o in OPT:
        if o.startswith(name + "="): return o.split("=", 1)[1]
    return default

D = 832; ROWB = D*2; NKS = 26
WL = D*D*2
FR_LAYER = 338
WP_LAYER = FR_LAYER*1024
WP_WAVE = 3*WP_LAYER
LDS_BIAS = NKS*4*1024
LDS_TOTAL = LDS_BIAS + 11264 + 16384
RING = 26
STFLAG = {"": "", "sc1": " sc1", "sc01": " sc0 sc1", "nt": " nt", "ntsc1": " sc1 nt"}[optval("st", "")]

ACC0 = 48
def acc(t, m, r=0): return ACC0 + (t*4+m)*4 + r
def accr(t, m): b = acc(t, m); return f"v[{b}:{b+3}]"
def X0(p, m): return (p*4+m)*4
def X0H(m): return 96 + 2*m
WR0 = 104
def WR(slot): b = WR0 + slot*4; return f"a[{b}:{b+3}]"
XF0 = 208
def XF(buf, m): b = XF0 + (buf*4+m)*4; return f"a[{b}:{b+3}]"
V_L16 = 1
V_W = 2
V_B = [[3, 4, 5, 6], [44, 45, 46, 47]]
V_SP = [7, 15]
V_RH = 8
V_ST = [11, 12]
V_STL = 36
V_HL = 37
LDS_ST = LDS_BIAS + 11264
LDS_STH = LDS_ST + 8192
V_BI = 13
V_BIH = 14
TX = 16
TU = 24
TK = 28
S_W = 3
S_MASK = 25
S_L = 26
S_LW = 27
S_LS = 34
S_WB = 20
S_X0 = 36
S_XS = 44
S_OUT = 48

def inst_of(w, P):
    if P >= 24: return 18 + (P-24)
    u, p = P//6, P % 6
    d = (u - w) & 3
    if p < 4: return 4*p + d
    if d == 0: return 16 + (p-4)
    return 20 + 2*(d-1) + (p-4)
def inst_src(i):
    if i < 16: return ('d', i % 4, i//4)
    if i < 18: return ('d', 0, 4 + (i-16))
    if i < 20: return ('s', i-18, 0)
    j = i - 20
    return ('d', 1 + j//2, 4 + j % 2)
def xoff(p, m): return ((p >> 1)*4 + m)*2048
def xaddr(i, m):
    k, a, b = inst_src(i)
    if k == 'd': return V_B[b & 1][a], xoff(b, m)
    return V_SP[a], m*2048
def VO(p): return V_B[p & 1][0]

NOTEXT = set()
class It:
    __slots__ = ("k", "t", "id", "needs", "key", "site")
    def __init__(s, k, t=None, id=None, needs=None, key=None):
        s.k, s.t, s.id, s.needs, s.key, s.site = k, t, id, needs or [], key, False
VM = ('G', 'ST'); LG = ('D', 'DW')

def epi_group_full(l, part, p, m, dest):
    gi = (p*4+m) if dest == 'lds' else p
    xb = TX + (gi % 2)*4
    rid = ('R', l, part, p, m)
    rd = It('D', f"ds_read_b128 v[{xb}:{xb+3}], v{VO(p)} offset:{xoff(p,m)}", id=rid)
    body = []
    for q in range(4):
        body.append(It('V', f"v_accvgpr_read_b32 v{TU+q}, a{X0(p,m)+q}"))
    first = True
    for q in range(4):
        t = 2*p + q//2
        a0 = acc(t, m, (q % 2)*2); a1 = a0+1
        k = TK + (q % 2)*4
        body.append(It('V', f"v_lshlrev_b32 v{k}, 16, v{TU+q}"))
        body.append(It('V', f"v_and_b32 v{k+1}, s{S_MASK}, v{TU+q}"))
        it = It('V', f"v_lshlrev_b32 v{k+2}, 16, v{xb+q}")
        if first: it.needs = [rid]; first = False
        body.append(it)
        body.append(It('V', f"v_and_b32 v{k+3}, s{S_MASK}, v{xb+q}"))
        body.append(It('V', f"v_fma_f32 v{a0}, v{k}, v{a0}, v{k+2}"))
        body.append(It('V', f"v_fma_f32 v{a1}, v{k+1}, v{a1}, v{k+3}"))
        body.append(It('V', f"v_cvt_pk_bf16_f32 v{acc(2*p,m,q)}, v{a0}, v{a1}"))
    wid = ('WR', l, part, p, m)
    if dest == 'lds':
        wr = It('DW', f"ds_write_b128 v{VO(p)}, {accr(2*p,m)} offset:{xoff(p,m)}", id=wid)
    else:
        if p % 2 == 0:
            wr = None
        else:
            q = p >> 1
            P, R = acc(2*(p-1), m), acc(2*p, m)
            so = f"s[{S_OUT+2*m}:{S_OUT+2*m+1}] offset:{q*128}{STFLAG}"
            wr = dict(
                dw=[It('DW', f"ds_write_b128 v{V_ST[0]}, v[{P}:{P+3}]", id=('SW', q, m, 0)),
                    It('DW', f"ds_write_b128 v{V_ST[1]}, v[{R}:{R+3}]", id=('SW', q, m, 1))],
                rd=[It('D', f"ds_read_b128 v[{P}:{P+3}], v{V_STL}", id=('SR', q, m, 0)),
                    It('D', f"ds_read_b128 v[{R}:{R+3}], v{V_STL} offset:1024", id=('SR', q, m, 1))],
                st=[It('ST', f"global_store_dwordx4 v{V_D[0]}, v[{P}:{P+3}], {so}", id=('WR', l, part, p-1, m), needs=[('SR', q, m, 0)]),
                    It('ST', f"global_store_dwordx4 v{V_D[1]}, v[{R}:{R+3}], {so}", id=('WR', l, part, p, m), needs=[('SR', q, m, 1)])])
    return rd, body, wr
def fix_xb(groups): return groups
def epi_group_half(l, m, dest):
    gi = m
    xb = TX + (gi % 2)*4
    rid = ('R', l, 'H', 0, m)
    rd = It('D', f"ds_read_b64 v[{xb}:{xb+1}], v{V_RH} offset:{m*2048}", id=rid)
    body = []
    for q in range(2):
        body.append(It('V', f"v_accvgpr_read_b32 v{TU+q}, a{X0H(m)+q}"))
    first = True
    for q in range(2):
        a0 = acc(12, m, q*2); a1 = a0+1
        k = TK + q*4
        body.append(It('V', f"v_lshlrev_b32 v{k}, 16, v{TU+q}"))
        body.append(It('V', f"v_and_b32 v{k+1}, s{S_MASK}, v{TU+q}"))
        it = It('V', f"v_lshlrev_b32 v{k+2}, 16, v{xb+q}")
        if first: it.needs = [rid]; first = False
        body.append(it)
        body.append(It('V', f"v_and_b32 v{k+3}, s{S_MASK}, v{xb+q}"))
        body.append(It('V', f"v_fma_f32 v{a0}, v{k}, v{a0}, v{k+2}"))
        body.append(It('V', f"v_fma_f32 v{a1}, v{k+1}, v{a1}, v{k+3}"))
        body.append(It('V', f"v_cvt_pk_bf16_f32 v{acc(12,m,q)}, v{a0}, v{a1}"))
    wid = ('WR', l, 'H', 0, m)
    b = acc(12, m)
    if dest == 'lds':
        wr = It('DW', f"ds_write_b64 v{V_RH}, v[{b}:{b+1}] offset:{m*2048}", id=wid)
    else:
        wr = It('DW', f"ds_write_b64 v{V_RH}, v[{b}:{b+1}] offset:{LDS_STH - 24*4096 + m*2048}", id=('SWH', m))
    return rd, body, wr

def epi_stream(l, part, dest):
    groups = []
    if dest == 'glb':
        if part == 'B':
            for m in range(4): groups.append(epi_group_half(l, m, dest))
        for q in ((0, 1) if part == 'A' else (2,)):
            for m in range(4):
                for p in (2*q, 2*q+1): groups.append(epi_group_full(l, part, p, m, dest))
        return groups
    if part == 'A':
        for p in range(4):
            for m in range(4): groups.append(epi_group_full(l, 'A', p, m, dest))
    else:
        for p in (4, 5):
            for m in range(4): groups.append(epi_group_full(l, 'B', p, m, dest))
        for m in range(4): groups.append(epi_group_half(l, m, dest))
    return groups

V_D = [9, 10]
def x0dma(q, k):
    if q == 'S':
        s = It('S', f"s_add_u32 m0, s{S_LS}, {k*1024}")
        g = It('G', f"global_load_lds_dwordx4 v{V_D[k]}, s[{S_XS}:{S_XS+1}]", id=('XL', 'S', k))
    else:
        m, hh = k >> 1, k & 1
        s = It('S', f"s_add_u32 m0, s{S_LW}, {(q*4+m)*2048 + hh*1024 - q*128}")
        g = It('G', f"global_load_lds_dwordx4 v{V_D[hh]}, s[{S_X0+2*m}:{S_X0+2*m+1}] offset:{q*128}", id=('XL', q, k))
    return s, g
def Q8(q): return [(q, k) for k in range(8)]
SS = [('S', 0), ('S', 1)]
SCHEDS = {
 "a": {0: [(1,0),(1,1)], 1: [(1,2),(1,3)], 2: [(1,4),(1,5)], 3: [(1,6),(1,7)],
       6: [(2,0)], 7: [(2,1)], 8: [(2,2)], 9: [(2,3)], 10: [(2,4), (2,5)], 11: [(2,6),('S',0)], 12: [(2,7),('S',1)]},
 "a2": {0: [(1,0)], 1: [(1,1),(1,2)], 2: [(1,3),(1,4)], 3: [(1,5),(1,6)], 4: [(1,7)],
       5: [(2,0)], 6: [(2,1)], 7: [(2,2)], 8: [(2,3)], 9: [(2,4)], 10: [(2,5)], 11: [(2,6)], 12: [(2,7),('S',0)], 13: [('S',1)]},
 "none": {},
}
X0SCHED = SCHEDS.get(optval("sched", "s8b"), {})
STAG = {
 "s8":  [(Q8(1), [0,1,2,3]), (Q8(2)+SS, [6,8,10,12])],
 "s8b": [(Q8(1), [0,1,3,4]), (Q8(2)+SS, [7,9,11,13])],
 "s8c": [(Q8(1), [0,1,2,3]), (Q8(2)+SS, [5,7,9,11])],
 "s8d": [(Q8(1), [0,2,3,4]), (Q8(2)+SS, [8,10,11,12])],
 "s4":  [(Q8(1)[:4], [0,1,2,3]), (Q8(1)[4:], [2,3,4,5]), (Q8(2)[:4], [6,7,8,9]), (Q8(2)[4:]+SS, [10,11,12,13])],
 "s1":  [(Q8(1), [0,0,0,0]), (Q8(2)+SS, [7,7,7,7])],
}.get(optval("sched", "s8b"))
NGRP = 4 if STAG else 1
S_SM = 24
SITES = []
if STAG:
    for loads, insts in STAG:
        for i in sorted(set(insts)):
            SITES.append((i, loads, sum(1 << g for g in range(4) if insts[g] == i)))
    SITES.sort(key=lambda x: x[0])
PRO_ORDER = optval("pro", "B,X0,W26").split(",")
PRO_W = max(int(t[1:]) for t in PRO_ORDER if t[0] == 'W')

HALFW = "halfW" in OPT
WFL = {"": "", "sc1": " sc1", "sc0": " sc0", "sc01": " sc0 sc1", "nt": " nt", "ntsc1": " sc1 nt", "ntsc0": " sc0 nt", "all": " sc0 sc1 nt"}[optval("wfl", "")]
def wload(F_local, Fabs):
    slot = (F_local + RING) % RING
    imm = (F_local % 8)*1024 - 4096
    if HALFW and F_local % 2 == 1: return It('S', "s_nop 0", id=None), True
    return It('G', f"global_load_dwordx4 {WR(slot)}, v{V_W}, s[{S_WB}:{S_WB+1}] offset:{imm}{WFL}", id=('W', Fabs)), False

def build_pass(name, l, last=False, first=False, group=None):
    isA = name == 'A'
    tiles = list(range(8)) if isA else [8, 9, 10, 11, 12]
    nt = len(tiles)
    n0 = 0 if isA else 208
    gaps = []
    for i in range(NKS):
        for ti, t in enumerate(tiles):
            n = n0 + i*nt + ti
            slot = n % RING
            for m in range(4):
                c = accr(t, 3) if i == 0 else accr(t, m)
                mf = It('M', f"v_mfma_f32_16x16x32_bf16 {accr(t,m)}, {WR(slot)}, {XF(i%2,m)}, {c}")
                gaps.append(dict(mf=mf, s=[], mem=[], v=[], i=i, ti=ti, m=m, n=n, wait=[]))
    def gidx(i, ti, m): return (i*nt + ti)*4 + m
    NG = len(gaps)
    head_needs = []
    for gi, g in enumerate(gaps):
        needs = []
        if g['m'] == 0:
            Fn = l*FR_LAYER + g['n']
            if not (HALFW and Fn >= RING and (g['n'] - RING) % 2 == 1 and ((g['n']-RING) % FR_LAYER) % 2 == 1):
                needs.append(('W', Fn))
            if g['ti'] == 0:
                needs += [('X', l, name, g['i'], mm) for mm in range(4)]
            if g['i'] == 0:
                needs.append(('BI', l, tiles[g['ti']]))
        if needs:
            if gi == 0: head_needs = needs
            else: gaps[gi-1]['wait'] += needs
    for g in gaps:
        if g['m'] == 3:
            n = g['n']; Fabs = l*FR_LAYER + n + RING
            if Fabs < 3*FR_LAYER:
                it, skipped = wload(n, Fabs)
                if not skipped: g['mem'].append(it)
                if n % 8 == 7 or n == FR_LAYER-1:
                    inc = 8192 if n % 8 == 7 else (n % 8 + 1)*1024
                    if "samew" in OPT and n == 311: inc -= WP_LAYER
                    g['v'].append(It('V', f"v_add_u32 v{V_W}, {inc}, v{V_W}"))
    last_wgap = max([gi for gi, g in enumerate(gaps) if any(x.k == 'G' for x in g['mem'])], default=-1)
    xg = [(0, 0), (0, 1), (0, 2), (1, 0)]
    for i in range(NKS):
        if i+1 < NKS: nl, nn, ni = l, name, i+1
        else:
            if isA: nl, nn, ni = l, 'B', 0
            else:
                if last: continue
                nl, nn, ni = l+1, 'A', 0
        for m in range(4):
            base, off = xaddr(ni, m)
            ti, mm = xg[m]
            if "noX" in OPT and not first and (m % 2 == 1 or "noXall" in OPT):
                NOTEXT.add(('X', nl, nn, ni, m)); continue
            gaps[gidx(i, ti, mm)]['mem'].append(
                It('D', f"ds_read_b128 {XF((i+1)%2,m)}, v{base} offset:{off}", id=('X', nl, nn, ni, m)))
    def add_barrier(gi, needs):
        gaps[gi]['wait'] += needs
        gaps[gi]['bar'] = True
    def endg(i): return gidx(i, nt-1, 3)
    groups = []; pre = []; post = []; post_earliest = 0; wr_earliest = 0; span = (0, NG-1)
    if isA:
        pre = [It('V', f"v_add_u32 v{V_BI}, {D*4}, v{V_BI}"), It('V', f"v_add_u32 v{V_BIH}, {D*4}, v{V_BIH}")]
        for tb, t in enumerate([8, 9, 10, 11]):
            p, h = t//2, t % 2
            post.append(It('D', f"ds_read_b128 {accr(t,3)}, v{V_BI} offset:{p*128+h*16}", id=('BI', l, t)))
        post.append(It('D', f"ds_read_b128 {accr(12,3)}, v{V_BIH}", id=('BI', l, 12)))
        post_earliest = gidx(18, 0, 0)
        if first:
            for i, lst in X0SCHED.items():
                for k, (p, m) in enumerate(lst):
                    s_, g_ = x0dma(p, m)
                    assert len(lst) <= 2
                    gi = gidx(i, 2 + 2*k, 1)
                    gaps[gi-1]['s'].append(s_)
                    gaps[gi]['mem'].append(g_)
            used = {}
            for k, (i, loads, gm) in enumerate(SITES):
                gi = gidx(i, 2 + 2*used.get(i, 0), 1); used[i] = used.get(i, 0) + 1
                its = []
                if group is None:
                    its.append(It('S', f"s_bitcmp1_b32 s{S_SM}, {k}"))
                    its.append(It('S', f"s_cbranch_scc0 Lsite{k}"))
                if group is None or (gm >> group) & 1:
                    for (p, m) in loads:
                        s_, g_ = x0dma(p, m)
                        its += [s_, It('S', "s_nop 0"), g_]
                if group is None: its.append(It('S', f"Lsite{k}:"))
                for it_ in its: it_.site = True
                gaps[gi]['site'] = its
            assert PRO_W % 8 == 0 or PRO_W == RING
            slots = [gidx(0, ti, mm) for ti in range(8) for mm in (1, 2)] + [gidx(1, ti, mm) for ti in range(8) for mm in (1, 2)]
            slots = [x for x in slots if not gaps[x]['mem'] and 'site' not in gaps[x]]
            for k, F in enumerate(range(PRO_W, RING)):
                gi = slots[k]
                gaps[gi]['mem'].append(It('G', f"global_load_dwordx4 {WR(F)}, v32, s[{S_WB}:{S_WB+1}] offset:{(F%8)*1024-4096}{WFL}", id=('W', F)))
                if F % 8 == 7: gaps[gi]['v'].append(It('V', "v_add_u32 v32, 8192, v32"))
            gaps[endg(6)]['wait'] += [('XL', 1, k) for k in range(8)]
            add_barrier(endg(7), [])
            gaps[endg(14)]['wait'] += [('XL', 2, k) for k in range(8)]
            add_barrier(endg(16), [('XL', 'S', 0), ('XL', 'S', 1)])
            cp_at = {0: 1, 1: 4, 2: 8, 3: 12, 4: 16, 5: 17}
            for p, i in cp_at.items():
                for m in range(4):
                    b = X0(p, m)
                    gaps[gidx(i, 4+m, 0)]['mem'].append(
                        It('D', f"ds_read_b128 a[{b}:{b+3}], v{VO(p)} offset:{xoff(p,m)}", id=('X0', p, m)))
            for m in range(4):
                b = X0H(m)
                gaps[gidx(18, 4+m, 0)]['mem'].append(It('D', f"ds_read_b64 a[{b}:{b+1}], v{V_RH} offset:{m*2048}", id=('X0H', m)))
            post_earliest = gidx(19, 0, 0)
        else:
            curB = [('WR', l-1, 'B', p, m) for p in (4, 5) for m in range(4)] + [('WR', l-1, 'H', 0, m) for m in range(4)]
            add_barrier(endg(16), curB)
            groups = epi_stream(l-1, 'B', 'lds')
            wr_earliest = 0
            span = (0, endg(14))
    else:
        dest = 'glb' if last else 'lds'
        groups = epi_stream(l, 'A', dest)
        if not last:
            g_bm = endg(14)
            add_barrier(g_bm, [])
            wr_earliest = g_bm + 1
            span = (0, endg(int(optval("pbspan", 22))))
            add_barrier(endg(25), [('WR', l, 'A', p, m) for p in range(4) for m in range(4)])
            for t in range(8):
                p, h = t//2, t % 2
                post.append(It('D', f"ds_read_b128 {accr(t,3)}, v{V_BI} offset:{D*4+p*128+h*16}", id=('BI', l+1, t)))
            post_earliest = gidx(25, 0, 0)
            if l == 0:
                gaps[g_bm]['wait'] += [('X0', p, m) for p in range(6) for m in range(4)] + [('X0H', m) for m in range(4)]
        else:
            wr_earliest = last_wgap + 1 if "stlate" in OPT else 0
            span = (0, endg(int(optval("pblspan", 24))))
    tag = 'PA0' if first else ('PBL' if last else 'P'+name)
    if optval("pdiag", "") == tag:
        lst = [int(x) for x in optval("plist", "2,5,8,11,14,17,20,22,24,25").split(",")]
        for k, i in enumerate(lst):
            for x in stamp_raw(2+k): gaps[endg(i)]['s'].append(It('S', x))
    ng = len(groups)
    g0, g1 = span
    lin = [(it, 0) for it in pre]
    if groups: lin.append((groups[0][0], g0))
    pend_st = []
    for k, (rd, body, wr) in enumerate(groups):
        e = g0 + (g1-g0)*k//ng
        if k+1 < ng: lin.append((groups[k+1][0], e))
        for it in body:
            if "noEpi" in OPT and not it.needs: continue
            lin.append((it, e))
        if pend_st and wr is None:
            for w_ in pend_st: lin.append((w_, e, 'w'))
            pend_st = []
        if isinstance(wr, dict):
            for w_ in wr['dw']: lin.append((w_, e, 'w'))
            for w_ in wr['rd']: lin.append((w_, e))
            pend_st = wr['st']
        elif wr is not None: lin.append((wr, e, 'w'))
    for w_ in pend_st: lin.append((w_, min(g1, e + 24), 'w'))
    qi = 0
    delayed = []
    post_q = list(post)
    for gi, g in enumerate(gaps):
        def nvec(): return len(g['mem']) + len(g['v']) + (2 if 'site' in g else 0)
        heavy = False
        if delayed and gi >= wr_earliest and nvec() == 0 and not g.get('bar'):
            it_ = delayed.pop(0)
            g['mem'].append(it_); heavy = True
            if it_.needs: g['wait'] += it_.needs
        if heavy: continue
        while qi < len(lin) and nvec() < 2:
            e = lin[qi]; it = e[0]
            if gi < e[1]: break
            if len(e) == 3:
                if gi < wr_earliest or delayed:
                    delayed.append(it); qi += 1; continue
                if nvec() == 0 and not g.get('bar'):
                    g['mem'].append(it); qi += 1
                    if it.needs: g['wait'] += it.needs
                break
            if it.k == 'D':
                if len(g['v']) == 0:
                    g['mem'].append(it); qi += 1; continue
                break
            if it.needs: g['wait'] += it.needs
            g['v'].append(it); qi += 1
        if qi >= len(lin) and not delayed and post_q and gi >= post_earliest and len(g['v']) == 0 and nvec() < 2 and not g.get('bar'):
            g['mem'].append(post_q.pop(0))
    assert qi == len(lin), (name, l, "stream not fully placed", qi, len(lin))
    assert not delayed and not post_q, (name, l, len(delayed), len(post_q))
    return gaps, head_needs

def gaps_to_items(gaps, tag):
    items = []
    for gi, g in enumerate(gaps):
        items.append(g['mf'])
        if g['wait'] or g.get('bar'):
            items.append(It('W', needs=list(g['wait']), key=(tag, gi)))
        if g.get('bar'): items.append(It('B', "s_barrier"))
        items += g['s']
        items += g.get('site', [])
        items += g['mem']
        items += g['v']
    return items

class Resolver:
    def __init__(s):
        s.vm = []; s.lg = []; s.vmdone = -1; s.lgdone = -1
        s.pos = {}
        s.waits = {}
    def run(s, items):
        for it in items:
            if it.k in VM:
                s.pos[it.id] = ('vm', len(s.vm)); s.vm.append(it.id)
            elif it.k in LG:
                s.pos[it.id] = ('lg', len(s.lg)); s.lg.append(it.id)
            elif it.k == 'W':
                nv = nl = None
                for nd in it.needs:
                    if nd in NOTEXT: continue
                    assert nd in s.pos, nd
                    c, p = s.pos[nd]
                    if c == 'vm':
                        if p > s.vmdone:
                            n = len(s.vm)-1-p; nv = n if nv is None else min(nv, n)
                    else:
                        if p > s.lgdone:
                            n = len(s.lg)-1-p; nl = n if nl is None else min(nl, n)
                if nv is not None: nv = min(nv, 63); s.vmdone = max(s.vmdone, len(s.vm)-1-nv)
                if nl is not None: nl = min(nl, 15); s.lgdone = max(s.lgdone, len(s.lg)-1-nl)
                old = s.waits.get(it.key, [None, None])
                s.waits[it.key] = [nv if old[0] is None else (old[0] if nv is None else min(old[0], nv)),
                                   nl if old[1] is None else (old[1] if nl is None else min(old[1], nl))]
    def text(s, items):
        out = []
        for it in items:
            if it.k == 'W':
                nv, nl = s.waits[it.key]
                parts = []
                if nv is not None: parts.append(f"vmcnt({nv})")
                if nl is not None: parts.append(f"lgkmcnt({nl})")
                if parts: out.append("s_waitcnt " + " ".join(parts))
            elif it.t is not None:
                out.append(it.t)
        return out

PDIAG = optval("pdiag", "") != ""
def stamp_raw(idx):
    return ["s_memtime s[58:59]", "s_memrealtime s[56:57]", "s_waitcnt lgkmcnt(0)", f"s_mov_b32 s{60+idx}, s58", f"s_mov_b32 s{80+idx}, s56"]
def stamp_txt(idx):
    if not DIAG: return []
    if PDIAG:
        i0 = idx[0] if isinstance(idx, tuple) else idx
        if 2 <= i0 <= 11:
            return []
    o = ["s_memtime s[58:59]", "s_memrealtime s[56:57]", "s_waitcnt lgkmcnt(0)"]
    if isinstance(idx, tuple):
        for L in range(3):
            o += [f"s_cmp_eq_u32 s{S_L}, {L}", f"s_cselect_b32 s{60+idx[0]+L}, s58, s{60+idx[0]+L}",
                  f"s_cselect_b32 s{80+idx[0]+L}, s56, s{80+idx[0]+L}"]
    else:
        o += [f"s_mov_b32 s{60+idx}, s58", f"s_mov_b32 s{80+idx}, s56"]
    return o

def table():
    ent = []
    for Pk in range(26):
        for Bk in range(13):
            for k in range(4):
                a, h = k >> 1, k & 1
                Pn = 2*Bk + a
                if Pn < 24: w, p = Pn//6, Pn % 6; t = 2*p + h
                else: w = 2*(Pn-24) + h; t = 12
                i = inst_of(w, Pk)
                if t < 8: pos = i*8 + t
                else: pos = 208 + i*5 + (t-8)
                ent.append(w*WP_WAVE + pos*1024)
    return ent

KNAME = "standalone__dcn_v2_cross__recsys_kernel"
def wpf_items(start, n, vd, tag):
    I = []
    I.append(It('S', f"s_mul_i32 s16, s35, {n*128}"))
    I.append(It('S', f"s_add_u32 s16, s16, {start*128}"))
    I.append(It('V', f"v_lshl_add_u32 v35, v41, 7, s16"))
    if n < 64: I.append(It('S', f"s_mov_b64 exec, {hex((1<<n)-1)}"))
    I.append(It('G', f"global_load_dword v21, v35, s[{S_WB}:{S_WB+1}]", id=('PF', tag)))
    if n < 64: I.append(It('S', "s_mov_b64 exec, -1"))
    return I
def pro_items():
    I = []
    def o(s):
        for x in s.split("\n"): I.append(It('S', x))
    def stamp(i):
        for x in stamp_txt(i): o(x)
    o(f".globl {KNAME}\n.p2align 8\n.type {KNAME},@function\n{KNAME}:")
    o("s_cmp_ge_u32 s2, 256")
    o("s_cbranch_scc1 Lend")
    if DIAG:
        o("s_memrealtime s[56:57]\ns_memtime s[58:59]\ns_waitcnt lgkmcnt(0)\ns_mov_b32 s98, s56\ns_mov_b32 s60, s58\ns_mov_b32 s80, s56")
    o("s_load_dwordx4 s[4:7], s[0:1], 0")
    o("s_load_dwordx4 s[8:11], s[0:1], 16")
    o("s_load_dwordx2 s[14:15], s[0:1], 40")
    o("v_lshrrev_b32 v40, 6, v0")
    o("v_and_b32 v41, 63, v0")
    o(f"v_readfirstlane_b32 s{S_W}, v40")
    o(f"v_lshlrev_b32 v{V_L16}, 4, v41")
    if "nocodepf" not in OPT:
        o("s_lshr_b32 s16, s2, 3\ns_and_b32 s16, s16, 31\ns_lshl_b32 s16, s16, 2")
        o(f"s_add_u32 s16, s16, s{S_W}\ns_lshl_b32 s16, s16, 9")
        o("s_min_u32 s16, s16, Lcode_end-Lpa0")
        o("s_getpc_b64 s[32:33]\nLpc2:\ns_add_u32 s32, s32, Lpa0-Lpc2\ns_addc_u32 s33, s33, 0")
        o(f"v_lshrrev_b32 v42, 1, v{V_L16}\nv_add_u32 v42, s16, v42")
        I.append(It('G', "global_load_dwordx2 v[22:23], v42, s[32:33]", id=('CP',)))
    o("v_and_b32 v42, 15, v41")
    o("v_lshrrev_b32 v43, 4, v41")
    o("v_lshlrev_b32 v40, 2, v0")
    o(f"v_lshrrev_b32 v28, 3, v41\nv_and_b32 v29, 7, v41\nv_xor_b32 v29, v29, v28")
    o(f"v_mul_u32_u24 v{V_D[0]}, {ROWB}, v28\nv_lshl_add_u32 v{V_D[0]}, v29, 4, v{V_D[0]}\nv_add_u32 v{V_D[1]}, {8*ROWB}, v{V_D[0]}")
    o(f"s_mul_i32 s{S_LW}, s{S_W}, {6*4096}")
    o(f"s_mul_i32 s16, s2, {64*ROWB}\ns_mul_i32 s17, s{S_W}, 384\ns_add_u32 s22, s16, s17")
    o(f"s_lshr_b32 s18, s{S_W}, 1\ns_and_b32 s19, s{S_W}, 1")
    o(f"s_mul_i32 s23, s{S_W}, {WP_WAVE}")
    o(f"v_add_u32 v31, 4096, v{V_L16}")
    o("s_waitcnt lgkmcnt(0)")
    stamp(15)
    o(f"s_mov_b32 s28, s8\ns_mov_b32 s29, s9\ns_mov_b32 s30, {3*ROWB}\ns_mov_b32 s31, 0x20000")
    o(f"s_add_u32 s{S_X0}, s4, s22\ns_addc_u32 s{S_X0+1}, s5, 0")
    for m in range(1, 4):
        o(f"s_add_u32 s{S_X0+2*m}, s{S_X0}, {m*16*ROWB}\ns_addc_u32 s{S_X0+2*m+1}, s{S_X0+1}, 0")
    o(f"s_add_u32 s{S_WB}, s14, s23\ns_addc_u32 s{S_WB+1}, s15, 0")
    o("s_lshr_b32 s35, s2, 3\ns_and_b32 s35, s35, 31")
    def dma(q):
        for k in range(8):
            s_, g_ = x0dma(q, k)
            I.append(s_); I.append(It('S', "s_nop 0")); I.append(g_)
    sdone = []
    def split_setup():
        if sdone: return
        sdone.append(1)
        o(f"s_mul_i32 s16, s2, {64*ROWB}\ns_mul_i32 s17, s{S_W}, {16*ROWB}\ns_add_u32 s16, s16, s17\ns_add_u32 s16, s16, {24*64}")
        o(f"s_add_u32 s{S_XS}, s4, s16\ns_addc_u32 s{S_XS+1}, s5, 0")
        o(f"s_add_u32 s{S_XS+2}, s10, s16\ns_addc_u32 s{S_XS+3}, s11, 0")
        o(f"s_lshl_b32 s16, s{S_W}, 11\ns_add_u32 s{S_LS}, s16, {24*4096}")
    wdone = 0
    for tok in PRO_ORDER:
        if tok == 'B':
            for i in range(5):
                if i < 4: I.append(It('G', f"buffer_load_dword v{16+i}, v40, s[28:31], 0 offen offset:{i*1024}", id=('BL', i)))
                else:
                    o("v_add_u32 v34, 4096, v40")
                    I.append(It('G', f"buffer_load_dword v{16+i}, v34, s[28:31], 0 offen", id=('BL', i)))
        elif tok == 'S':
            split_setup()
            for mm in range(2):
                s_, g_ = x0dma('S', mm)
                I.append(s_); I.append(It('S', "s_nop 0")); I.append(g_)
        elif tok[0] == 'X': dma(int(tok[1:]))
        elif tok[0] == 'W':
            n = int(tok[1:])
            for F in range(wdone, n):
                I.append(It('G', f"global_load_dwordx4 {WR(F)}, v31, s[{S_WB}:{S_WB+1}] offset:{(F%8)*1024-4096}{WFL}", id=('W', F)))
                if F % 8 == 7: o("v_add_u32 v31, 8192, v31")
            wdone = n
        elif tok[0] == 'F':
            st_, n_ = tok[1:].split("_")
            I.extend(wpf_items(int(st_), int(n_), 38, tok))
        if tok == 'X0': stamp(16)
        if tok[0] == 'W': stamp(17)
    assert wdone == PRO_W
    if PRO_W < RING: o(f"v_add_u32 v32, {4096 + PRO_W*1024}, v{V_L16}")
    stamp(12)
    o(f"s_mov_b32 s{S_MASK}, 0xffff0000")
    o("v_and_b32 v28, 7, v42\nv_lshrrev_b32 v29, 3, v42\nv_xor_b32 v30, v43, v28")
    o("v_lshlrev_b32 v30, 4, v30\nv_lshl_add_u32 v30, v28, 7, v30\nv_lshl_add_u32 v30, v29, 10, v30")
    o("v_xor_b32 v33, 64, v30")
    for d in range(4):
        o(f"s_add_u32 s16, s{S_W}, {d}\ns_and_b32 s16, s16, 3\ns_mul_i32 s16, s16, {6*4096}")
        o(f"v_add_u32 v{V_B[0][d]}, s16, v30\nv_add_u32 v{V_B[1][d]}, s16, v33")
    o(f"v_add_u32 v{V_SP[0]}, {24*4096}, v30\nv_add_u32 v{V_SP[1]}, {24*4096}, v33")
    o(f"s_lshl_b32 s16, s18, 6\nv_xor_b32 v{V_RH}, s16, v{V_SP[0]}\ns_lshl_b32 s17, s19, 3\nv_add_u32 v{V_RH}, s17, v{V_RH}")
    o(f"s_lshl_b32 s16, s{S_W}, 11\ns_add_u32 s17, s16, {LDS_ST}")
    o(f"v_add_u32 v{V_ST[0]}, s17, v30\nv_add_u32 v{V_ST[1]}, s17, v33\nv_add_u32 v{V_STL}, s17, v{V_L16}")
    o(f"s_add_u32 s17, s16, {LDS_STH}\nv_add_u32 v{V_HL}, s17, v{V_L16}")
    o("v_lshlrev_b32 v28, 5, v43")
    o(f"s_mul_i32 s16, s{S_W}, 768\ns_add_u32 s16, s16, {LDS_BIAS-D*4}")
    o(f"v_add_u32 v{V_BI}, s16, v28")
    o(f"s_lshl_b32 s16, s18, 7\ns_lshl_b32 s17, s19, 4\ns_add_u32 s16, s16, s17\ns_add_u32 s16, s16, {LDS_BIAS-D*4+24*128}")
    o(f"v_add_u32 v{V_BIH}, s16, v28")
    o(f"v_add_u32 v{V_W}, {4096 + RING*1024}, v{V_L16}")
    o(f"s_mov_b32 s{S_L}, 0")
    if STAG:
        o(f"s_lshr_b32 s16, s2, {optval('gsh', 3)}\ns_and_b32 s16, s16, 3")
        for g in range(4):
            mask = sum(1 << k for k, (i, loads, gm) in enumerate(SITES) if (gm >> g) & 1)
            if g == 0: o(f"s_mov_b32 s{S_SM}, {mask}")
            else: o(f"s_cmp_eq_u32 s16, {g}\ns_cselect_b32 s{S_SM}, {mask}, s{S_SM}")
    o(f"s_add_u32 s{S_OUT}, s10, s22\ns_addc_u32 s{S_OUT+1}, s11, 0")
    for m in range(1, 4):
        o(f"s_add_u32 s{S_OUT+2*m}, s{S_OUT}, {m*16*ROWB}\ns_addc_u32 s{S_OUT+2*m+1}, s{S_OUT+1}, 0")
    split_setup()
    o(f"v_lshlrev_b32 v40, 1, v40\nv_add_u32 v40, {LDS_BIAS}, v40")
    I.append(It('W', needs=[('BL', 4)], key=('PRO', 0)))
    stamp(13)
    for i in range(5):
        o(f"v_lshlrev_b32 v{28+2*(i%2)}, 16, v{16+i}\nv_and_b32 v{29+2*(i%2)}, s{S_MASK}, v{16+i}")
        I.append(It('DW', f"ds_write_b64 v40, v[{28+2*(i%2)}:{29+2*(i%2)}] offset:{i*2048}", id=('BW', i)))
    I.append(It('W', needs=[('BW', 4)] + [('XL', 0, k) for k in range(8)], key=('PRO', 1)))
    stamp(14)
    I.append(It('B', "s_barrier"))
    for m in range(4):
        base, off = xaddr(0, m)
        I.append(It('D', f"ds_read_b128 {XF(0,m)}, v{base} offset:{off}", id=('X', 0, 'A', 0, m)))
    for t in range(8):
        p, h = t//2, t % 2
        I.append(It('D', f"ds_read_b128 {accr(t,3)}, v{V_BI} offset:{D*4+p*128+h*16}", id=('BI', 0, t)))
    return I

def pack_kernel(o):
    name = "dcn_pack_kernel"
    o(f".globl {name}\n.p2align 8\n.type {name},@function\n{name}:")
    o("s_load_dwordx2 s[6:7], s[0:1], 8")
    o("s_load_dwordx2 s[14:15], s[0:1], 40")
    o("v_lshrrev_b32 v40, 6, v0\nv_and_b32 v41, 63, v0")
    o("v_readfirstlane_b32 s3, v40")
    o("v_lshlrev_b32 v1, 4, v41")
    o("v_lshrrev_b32 v43, 4, v41")
    o("s_getpc_b64 s[34:35]\nLpcp:\ns_add_u32 s34, s34, Ltable-Lpcp\ns_addc_u32 s35, s35, 0")
    PF = int(optval("pf", 0))
    if PF:
        o("s_load_dwordx2 s[4:5], s[0:1], 0")
        o("s_cmp_ge_u32 s2, 256\ns_cbranch_scc1 Lpk_end")
        o(f"v_mul_u32_u24 v44, {ROWB}, v41")
        o(f"s_mul_i32 s44, s2, {64*ROWB}\ns_mul_i32 s45, s3, 384\ns_add_u32 s44, s44, s45")
    o("s_lshl_b32 s40, s2, 2\ns_add_u32 s40, s40, s3")
    if PF:
        o("s_min_u32 s40, s40, 1013")
    else:
        o("s_cmp_ge_u32 s40, 1014\ns_cbranch_scc1 Lpk_end")
    o(f"s_mov_b32 s41, {(2**32+337)//338}\ns_mul_hi_u32 s42, s40, s41")
    o("s_mul_i32 s41, s42, 338\ns_sub_u32 s40, s40, s41")
    o(f"s_mov_b32 s41, {(2**32+12)//13}\ns_mul_hi_u32 s43, s40, s41")
    o("s_mul_i32 s41, s43, 13\ns_sub_u32 s41, s40, s41")
    o("s_lshl_b32 s24, s40, 4")
    o(f"s_load_dwordx4 s[16:19], s[34:35], s24")
    o(f"s_mul_i32 s46, s42, {WP_LAYER}")
    o(f"s_mul_i32 s40, s42, {WL}\ns_mul_i32 s43, s43, {32*ROWB}\ns_add_u32 s40, s40, s43\ns_lshl_b32 s41, s41, 7\ns_add_u32 s40, s40, s41")
    o("v_lshrrev_b32 v40, 3, v41\nv_and_b32 v42, 7, v41")
    o(f"v_mul_u32_u24 v30, {ROWB}, v40\nv_lshl_add_u32 v30, v42, 4, v30")
    for q in range(1, 4):
        o(f"v_add_u32 v{30+q}, {q*8*ROWB}, v30")
    o("v_bfe_u32 v40, v41, 2, 2\nv_and_b32 v42, 3, v41")
    o("v_lshl_add_u32 v40, v43, 3, v40")
    o("v_lshlrev_b32 v40, 7, v40\nv_lshl_add_u32 v34, v42, 4, v40")
    o("s_lshl_b32 s39, s3, 12")
    o("v_add_u32 v34, s39, v34")
    o("s_waitcnt lgkmcnt(0)")
    o("s_add_u32 s22, s6, s40\ns_addc_u32 s23, s7, 0")
    for q in range(4):
        o(f"s_add_u32 m0, s39, {q*1024}\ns_nop 0")
        o(f"global_load_lds_dwordx4 v{30+q}, s[22:23]")
    npf = 0
    if PF:
        o("s_add_u32 s4, s4, s44\ns_addc_u32 s5, s5, 0")
        for c in range(min(PF, 3)):
            o(f"global_load_dword v{45+c}, v44, s[4:5] offset:{c*128}"); npf += 1
        if PF >= 4:
            o(f"s_mul_i32 s45, s3, 384\ns_sub_u32 s45, 1536, s45\nv_add_u32 v43, s45, v44")
            o(f"global_load_dword v48, v43, s[4:5]"); npf += 1
    for k in range(4):
        o(f"s_add_u32 s40, s{16+k}, s46")
        o(f"v_add_u32 v{35+k}, s40, v1")
    o(f"s_waitcnt vmcnt({npf})")
    for k in range(4):
        a, h = k >> 1, k & 1
        b = 8 + k*4
        off = 64*a + 8*h
        o(f"ds_read_b64_tr_b16 v[{b}:{b+1}], v34 offset:{off}")
        o(f"ds_read_b64_tr_b16 v[{b+2}:{b+3}], v34 offset:{off+512}")
    for k in range(4):
        b = 8 + k*4
        o(f"s_waitcnt lgkmcnt({2*(3-k)})")
        o(f"global_store_dwordx4 v{35+k}, v[{b}:{b+3}], s[14:15]")
    o("Lpk_end:\ns_endpgm")

class Asm:
    def __init__(self): self.l = []
    def __call__(self, s):
        for x in s.split("\n"): self.l.append(x)
    def text(self): return "\n".join(self.l)

def e_items():
    groups = epi_stream(2, 'B', 'glb')
    items = [It('S', "s_nop 7")]
    items.append(groups[0][0])
    pend = []
    nW = [0]
    def W(needs):
        nW[0] += 1
        items.append(It('W', needs=needs, key=('E', nW[0])))
    for k, (rd, body, wr) in enumerate(groups):
        if k+1 < len(groups): items.append(groups[k+1][0])
        for it in body:
            if it.needs: W(it.needs)
            items.append(it)
        if pend and wr is None:
            for w_ in pend:
                W(w_.needs); items.append(w_)
            pend = []
        if isinstance(wr, dict):
            items.extend(wr['dw']); items.extend(wr['rd']); pend = wr['st']
        elif wr is not None: items.append(wr)
        if k == 5:
            W([('SWH', m) for m in range(4)])
            items.append(It('B', "s_barrier"))
            items.append(It('D', f"ds_read_b128 v[{acc(12,0)}:{acc(12,0)+3}], v{V_HL}", id=('SRH', 0)))
            items.append(It('D', f"ds_read_b128 v[{acc(12,1)}:{acc(12,1)+3}], v{V_HL} offset:1024", id=('SRH', 1)))
        if k == 7:
            for hh in range(2):
                W([('SRH', hh)])
                items.append(It('ST', f"global_store_dwordx4 v{V_D[hh]}, v[{acc(12,hh)}:{acc(12,hh)+3}], s[{S_XS+2}:{S_XS+3}]{STFLAG}", id=('WRH', hh)))
    for w_ in pend:
        W(w_.needs); items.append(w_)
    return items

def verify(seq):
    idx = 0; wr = {}; bars = []; xr = []; waitpos = {}; issued = {}
    cps = []
    for bn, items in seq:
        for it in items:
            idx += 1
            if it.k == 'B': bars.append(idx)
            if it.k == 'DW' and it.id[0] == 'WR': wr[it.id] = idx
            if it.k == 'D' and it.id[0] == 'X': xr.append((idx, it.id))
            if it.k == 'D' and it.id[0] in ('X0', 'X0H'): cps.append((idx, it.id))
            if it.k == 'W':
                for nd in it.needs:
                    if nd not in waitpos: waitpos[nd] = idx
    def bar_between(a, b):
        j = bisect.bisect(bars, a)
        return j < len(bars) and bars[j] < b
    for ridx, (_, l, nm, i, m) in xr:
        k, a, b = inst_src(i)
        if l == 0:
            if k == 'd':
                w = max(waitpos[('XL', b >> 1, 2*m)], waitpos[('XL', b >> 1, 2*m+1)])
                assert w < ridx, ("x0 RAW own", nm, i, m)
                if a != 0: assert bar_between(w, ridx), ("x0 RAW barrier", nm, i, m)
            else:
                w = max(waitpos[('XL', 'S', 0)], waitpos[('XL', 'S', 1)])
                assert bar_between(w, ridx), ("x0 RAW barrier S", nm, i, m)
            continue
        if k == 'd':
            part = 'A' if b < 4 else 'B'
            wid = ('WR', l-1, part, b, m)
            own = (a == 0)
        else:
            wid = ('WR', l-1, 'H', 0, m); own = False
        assert wid in wr, (wid,)
        w = wr[wid]
        assert w < ridx, ("RAW own order", wid, l, nm, i, m)
        if not own:
            assert wid in waitpos and bar_between(waitpos[wid], ridx), ("RAW barrier", wid, l, nm, i, m)
    for cidx, cid in cps:
        if cid[0] == 'X0': assert max(waitpos[('XL', cid[1] >> 1, 2*cid[2])], waitpos[('XL', cid[1] >> 1, 2*cid[2]+1)]) < cidx, cid
        else: assert bar_between(max(waitpos[('XL', 'S', 0)], waitpos[('XL', 'S', 1)]), cidx), cid
    for wid, w in wr.items():
        _, lw, part, p, m = wid
        last = 0
        for ridx, (_, l, nm, i, mm) in xr:
            if l != lw or mm != m: continue
            k, a, b = inst_src(i)
            same = (k == 'd' and part in 'AB' and b == p) or (k == 's' and part == 'H')
            if same: last = max(last, waitpos[('X', l, nm, i, mm)])
        assert bar_between(last, w), ("WAR barrier", wid, last, w)
    print("verify ok: barriers", len(bars), file=sys.stderr)

def main():
    o = Asm()
    o(f"; @launch kernel=dcn_pack_kernel grid=({256 if int(optval('pf', 0)) else 254},1,1) block=(256,1,1) lds=16384")
    o(f"; @launch kernel={KNAME} grid=(256,1,1) block=(256,1,1) lds={LDS_TOTAL}")
    o('.amdgcn_target "amdgcn-amd-amdhsa--gfx950"')
    o(".text")
    pack_kernel(o)
    def blk(tag, name, l, last=False, first=False, group=None):
        gaps, head = build_pass(name, l, last, first, group)
        return [It('W', needs=head, key=(tag, 'head'))] + gaps_to_items(gaps, tag)
    def mkseq(group):
        seq = [('PRO', pro_items())]
        seq.append(('PA0', blk('PA0', 'A', 0, first=True, group=group)))
        seq.append(('PB', blk('PB', 'B', 0)))
        seq.append(('PA', blk('PA', 'A', 1)))
        seq.append(('PB', blk('PB', 'B', 1)))
        seq.append(('PA', blk('PA', 'A', 2)))
        seq.append(('PBL', blk('PBL', 'B', 2, True)))
        seq.append(('E', e_items()))
        return seq
    R = Resolver()
    for g in (range(NGRP) if STAG else [None]):
        Rg = Resolver(); Rg.waits = R.waits
        sq = mkseq(g)
        for bn, items in sq: Rg.run(items)
        if not NOTEXT and "noEpi" not in OPT: verify(sq)
    seq = mkseq(None)
    ref = [(it.k, it.t, it.id, it.key) for bn, items in seq for it in items if not it.site]
    for g in (range(NGRP) if STAG else []):
        cur = [(it.k, it.t, it.id, it.key) for bn, items in mkseq(g) for it in items if not it.site]
        assert cur == ref, "group-dependent placement"
    def emit(items):
        for s in R.text(items): o(s)
    emit(seq[0][1])
    for s in stamp_txt(1): o(s)
    o(".p2align 6")
    o("Lpa0:")
    emit(seq[1][1])
    o(".p2align 6")
    o("Lloop:")
    for s in stamp_txt((2,)): o(s)
    if DIAG and optval("pdiag", "") == 'PB':
        for s in stamp_raw(1): o(s)
    emit(seq[2][1])
    o(f"s_add_u32 s{S_L}, s{S_L}, 1")
    if DIAG and optval("pdiag", "") == 'PA':
        for s in stamp_raw(1): o(s)
    for s in stamp_txt((3,)): o(s)
    emit(seq[3][1])
    o(f"s_cmp_lt_u32 s{S_L}, 2")
    o("s_cbranch_scc1 Lloop")
    for s in stamp_txt(6): o(s)
    if DIAG and optval("pdiag", "") == 'PBL':
        for s in stamp_raw(1): o(s)
    emit(seq[6][1])
    for s in stamp_txt(7): o(s)
    emit(seq[7][1])
    if DIAG:
        for s in stamp_txt(8): o(s)
        o("s_waitcnt vmcnt(0)")
        for s in stamp_txt(9): o(s)
        o("s_memrealtime s[56:57]\ns_waitcnt lgkmcnt(0)\ns_mov_b32 s99, s56")
        for i in range(40):
            o(f"v_writelane_b32 v20, s{60+i}, {i}")
        o("v_and_b32 v21, 63, v0\nv_lshlrev_b32 v21, 2, v21")
        o(f"s_lshl_b32 s56, s2, 2\ns_add_u32 s56, s56, s{S_W}\ns_lshl_b32 s56, s56, 8\ns_add_u32 s56, s56, 0x800000")
        o("v_add_u32 v21, s56, v21")
        o("global_store_dword v21, v20, s[14:15]")
    o("Lend:")
    o("s_endpgm")
    o("Lcode_end:")
    o(".p2align 6")
    o(".type Ltable,@object")
    o("Ltable:")
    tb = table()
    for i in range(0, len(tb), 8):
        o(".long " + ", ".join(str(x) for x in tb[i:i+8]))
    o(".size Ltable, .-Ltable")
    o('.section .rodata,"a"')
    for nm, nv, ns in ((KNAME, 512, 102), ("dcn_pack_kernel", 56, 64)):
        o(f""".p2align 6
.amdhsa_kernel {nm}
  .amdhsa_next_free_vgpr {nv}
  .amdhsa_next_free_sgpr {ns}
  .amdhsa_accum_offset {min(nv, 256)}
  .amdhsa_group_segment_fixed_size 0
  .amdhsa_kernarg_size 48
  .amdhsa_user_sgpr_count 2
  .amdhsa_user_sgpr_kernarg_segment_ptr 1
  .amdhsa_system_sgpr_workgroup_id_x 1
.end_amdhsa_kernel""")
    open(sys.argv[1], "w").write(o.text() + "\n")
main()
```

```python
import sys, bisect
OPT = set(sys.argv[2:])
DIAG = "diag" in OPT
def optval(name, default):
    for o in OPT:
        if o.startswith(name + "="): return o.split("=", 1)[1]
    return default

D = 832; ROWB = D*2; NKS = 26
WL = D*D*2
FR_LAYER = 338
WP_LAYER = FR_LAYER*1024
WP_WAVE = 3*WP_LAYER
LDS_BIAS = NKS*4*1024
LDS_TOTAL = LDS_BIAS + 11264 + 16384
RING = 26
STFLAG = {"": "", "sc1": " sc1", "sc01": " sc0 sc1", "nt": " nt", "ntsc1": " sc1 nt"}[optval("st", "")]

ACC0 = 48
def acc(t, m, r=0): return ACC0 + (t*4+m)*4 + r
def accr(t, m): b = acc(t, m); return f"v[{b}:{b+3}]"
def X0(p, m): return (p*4+m)*4
def X0H(m): return 96 + 2*m
WR0 = 104
def WR(slot): b = WR0 + slot*4; return f"a[{b}:{b+3}]"
XF0 = 208
def XF(buf, m): b = XF0 + (buf*4+m)*4; return f"a[{b}:{b+3}]"
V_L16 = 1
V_W = 2
V_B = [[3, 4, 5, 6], [44, 45, 46, 47]]
V_SP = [7, 15]
V_RH = 8
V_ST = [11, 12]
V_STL = 36
V_HL = 37
LDS_ST = LDS_BIAS + 11264
LDS_STH = LDS_ST + 8192
V_BI = 13
V_BIH = 14
TX = 16
TU = 24
TK = 28
S_W = 3
S_MASK = 25
S_L = 26
S_LW = 27
S_LS = 34
S_WB = 20
S_X0 = 36
S_XS = 44
S_OUT = 48

def inst_of(w, P):
    if P >= 24: return 18 + (P-24)
    u, p = P//6, P % 6
    d = (u - w) & 3
    if p < 4: return 4*p + d
    if d == 0: return 16 + (p-4)
    return 20 + 2*(d-1) + (p-4)
def inst_src(i):
    if i < 16: return ('d', i % 4, i//4)
    if i < 18: return ('d', 0, 4 + (i-16))
    if i < 20: return ('s', i-18, 0)
    j = i - 20
    return ('d', 1 + j//2, 4 + j % 2)
def xoff(p, m): return ((p >> 1)*4 + m)*2048
def xaddr(i, m):
    k, a, b = inst_src(i)
    if k == 'd': return V_B[b & 1][a], xoff(b, m)
    return V_SP[a], m*2048
def VO(p): return V_B[p & 1][0]

NOTEXT = set()
class It:
    __slots__ = ("k", "t", "id", "needs", "key", "site")
    def __init__(s, k, t=None, id=None, needs=None, key=None):
        s.k, s.t, s.id, s.needs, s.key, s.site = k, t, id, needs or [], key, False
VM = ('G', 'ST'); LG = ('D', 'DW')

def epi_group_full(l, part, p, m, dest):
    gi = (p*4+m) if dest == 'lds' else p
    xb = TX + (gi % 2)*4
    rid = ('R', l, part, p, m)
    rd = It('D', f"ds_read_b128 v[{xb}:{xb+3}], v{VO(p)} offset:{xoff(p,m)}", id=rid)
    body = []
    for q in range(4):
        body.append(It('V', f"v_accvgpr_read_b32 v{TU+q}, a{X0(p,m)+q}"))
    first = True
    for q in range(4):
        t = 2*p + q//2
        a0 = acc(t, m, (q % 2)*2); a1 = a0+1
        k = TK + (q % 2)*4
        body.append(It('V', f"v_lshlrev_b32 v{k}, 16, v{TU+q}"))
        body.append(It('V', f"v_and_b32 v{k+1}, s{S_MASK}, v{TU+q}"))
        it = It('V', f"v_lshlrev_b32 v{k+2}, 16, v{xb+q}")
        if first: it.needs = [rid]; first = False
        body.append(it)
        body.append(It('V', f"v_and_b32 v{k+3}, s{S_MASK}, v{xb+q}"))
        body.append(It('V', f"v_fma_f32 v{a0}, v{k}, v{a0}, v{k+2}"))
        body.append(It('V', f"v_fma_f32 v{a1}, v{k+1}, v{a1}, v{k+3}"))
        body.append(It('V', f"v_cvt_pk_bf16_f32 v{acc(2*p,m,q)}, v{a0}, v{a1}"))
    wid = ('WR', l, part, p, m)
    if dest == 'lds':
        wr = It('DW', f"ds_write_b128 v{VO(p)}, {accr(2*p,m)} offset:{xoff(p,m)}", id=wid)
    else:
        if p % 2 == 0:
            wr = None
        else:
            q = p >> 1
            P, R = acc(2*(p-1), m), acc(2*p, m)
            so = f"s[{S_OUT+2*m}:{S_OUT+2*m+1}] offset:{q*128}{STFLAG}"
            wr = dict(
                dw=[It('DW', f"ds_write_b128 v{V_ST[0]}, v[{P}:{P+3}]", id=('SW', q, m, 0)),
                    It('DW', f"ds_write_b128 v{V_ST[1]}, v[{R}:{R+3}]", id=('SW', q, m, 1))],
                rd=[It('D', f"ds_read_b128 v[{P}:{P+3}], v{V_STL}", id=('SR', q, m, 0)),
                    It('D', f"ds_read_b128 v[{R}:{R+3}], v{V_STL} offset:1024", id=('SR', q, m, 1))],
                st=[It('ST', f"global_store_dwordx4 v{V_D[0]}, v[{P}:{P+3}], {so}", id=('WR', l, part, p-1, m), needs=[('SR', q, m, 0)]),
                    It('ST', f"global_store_dwordx4 v{V_D[1]}, v[{R}:{R+3}], {so}", id=('WR', l, part, p, m), needs=[('SR', q, m, 1)])])
    return rd, body, wr
def fix_xb(groups): return groups
def epi_group_half(l, m, dest):
    gi = m
    xb = TX + (gi % 2)*4
    rid = ('R', l, 'H', 0, m)
    rd = It('D', f"ds_read_b64 v[{xb}:{xb+1}], v{V_RH} offset:{m*2048}", id=rid)
    body = []
    for q in range(2):
        body.append(It('V', f"v_accvgpr_read_b32 v{TU+q}, a{X0H(m)+q}"))
    first = True
    for q in range(2):
        a0 = acc(12, m, q*2); a1 = a0+1
        k = TK + q*4
        body.append(It('V', f"v_lshlrev_b32 v{k}, 16, v{TU+q}"))
        body.append(It('V', f"v_and_b32 v{k+1}, s{S_MASK}, v{TU+q}"))
        it = It('V', f"v_lshlrev_b32 v{k+2}, 16, v{xb+q}")
        if first: it.needs = [rid]; first = False
        body.append(it)
        body.append(It('V', f"v_and_b32 v{k+3}, s{S_MASK}, v{xb+q}"))
        body.append(It('V', f"v_fma_f32 v{a0}, v{k}, v{a0}, v{k+2}"))
        body.append(It('V', f"v_fma_f32 v{a1}, v{k+1}, v{a1}, v{k+3}"))
        body.append(It('V', f"v_cvt_pk_bf16_f32 v{acc(12,m,q)}, v{a0}, v{a1}"))
    wid = ('WR', l, 'H', 0, m)
    b = acc(12, m)
    if dest == 'lds':
        wr = It('DW', f"ds_write_b64 v{V_RH}, v[{b}:{b+1}] offset:{m*2048}", id=wid)
    else:
        wr = It('DW', f"ds_write_b64 v{V_RH}, v[{b}:{b+1}] offset:{LDS_STH - 24*4096 + m*2048}", id=('SWH', m))
    return rd, body, wr

def epi_stream(l, part, dest):
    groups = []
    if dest == 'glb':
        if part == 'B':
            for m in range(4): groups.append(epi_group_half(l, m, dest))
        for q in ((0, 1) if part == 'A' else (2,)):
            for m in range(4):
                for p in (2*q, 2*q+1): groups.append(epi_group_full(l, part, p, m, dest))
        return groups
    if part == 'A':
        for p in range(4):
            for m in range(4): groups.append(epi_group_full(l, 'A', p, m, dest))
    else:
        for p in (4, 5):
            for m in range(4): groups.append(epi_group_full(l, 'B', p, m, dest))
        for m in range(4): groups.append(epi_group_half(l, m, dest))
    return groups

V_D = [9, 10]
def x0dma(q, k):
    if q == 'S':
        s = It('S', f"s_add_u32 m0, s{S_LS}, {k*1024}")
        g = It('G', f"global_load_lds_dwordx4 v{V_D[k]}, s[{S_XS}:{S_XS+1}]", id=('XL', 'S', k))
    else:
        m, hh = k >> 1, k & 1
        s = It('S', f"s_add_u32 m0, s{S_LW}, {(q*4+m)*2048 + hh*1024 - q*128}")
        g = It('G', f"global_load_lds_dwordx4 v{V_D[hh]}, s[{S_X0+2*m}:{S_X0+2*m+1}] offset:{q*128}", id=('XL', q, k))
    return s, g
def Q8(q): return [(q, k) for k in range(8)]
SS = [('S', 0), ('S', 1)]
SCHEDS = {
 "a": {0: [(1,0),(1,1)], 1: [(1,2),(1,3)], 2: [(1,4),(1,5)], 3: [(1,6),(1,7)],
       6: [(2,0)], 7: [(2,1)], 8: [(2,2)], 9: [(2,3)], 10: [(2,4), (2,5)], 11: [(2,6),('S',0)], 12: [(2,7),('S',1)]},
 "a2": {0: [(1,0)], 1: [(1,1),(1,2)], 2: [(1,3),(1,4)], 3: [(1,5),(1,6)], 4: [(1,7)],
       5: [(2,0)], 6: [(2,1)], 7: [(2,2)], 8: [(2,3)], 9: [(2,4)], 10: [(2,5)], 11: [(2,6)], 12: [(2,7),('S',0)], 13: [('S',1)]},
 "none": {},
}
X0SCHED = SCHEDS.get(optval("sched", "s8b"), {})
STAG = {
 "s8":  [(Q8(1), [0,1,2,3]), (Q8(2)+SS, [6,8,10,12])],
 "s8b": [(Q8(1), [0,1,3,4]), (Q8(2)+SS, [7,9,11,13])],
 "s8c": [(Q8(1), [0,1,2,3]), (Q8(2)+SS, [5,7,9,11])],
 "s8d": [(Q8(1), [0,2,3,4]), (Q8(2)+SS, [8,10,11,12])],
 "s4":  [(Q8(1)[:4], [0,1,2,3]), (Q8(1)[4:], [2,3,4,5]), (Q8(2)[:4], [6,7,8,9]), (Q8(2)[4:]+SS, [10,11,12,13])],
 "s1":  [(Q8(1), [0,0,0,0]), (Q8(2)+SS, [7,7,7,7])],
}.get(optval("sched", "s8b"))
NGRP = 4 if STAG else 1
S_SM = 24
SITES = []
if STAG:
    for loads, insts in STAG:
        for i in sorted(set(insts)):
            SITES.append((i, loads, sum(1 << g for g in range(4) if insts[g] == i)))
    SITES.sort(key=lambda x: x[0])
PRO_ORDER = optval("pro", "B,X0,W26").split(",")
PRO_W = max(int(t[1:]) for t in PRO_ORDER if t[0] == 'W')

HALFW = "halfW" in OPT
WFL = {"": "", "sc1": " sc1", "sc0": " sc0", "sc01": " sc0 sc1", "nt": " nt", "ntsc1": " sc1 nt", "ntsc0": " sc0 nt", "all": " sc0 sc1 nt"}[optval("wfl", "")]
def wload(F_local, Fabs):
    slot = (F_local + RING) % RING
    imm = (F_local % 8)*1024 - 4096
    if HALFW and F_local % 2 == 1: return It('S', "s_nop 0", id=None), True
    return It('G', f"global_load_dwordx4 {WR(slot)}, v{V_W}, s[{S_WB}:{S_WB+1}] offset:{imm}{WFL}", id=('W', Fabs)), False

def build_pass(name, l, last=False, first=False, group=None):
    isA = name == 'A'
    tiles = list(range(8)) if isA else [8, 9, 10, 11, 12]
    nt = len(tiles)
    n0 = 0 if isA else 208
    gaps = []
    ORD = optval("ord", "tm")
    for i in range(NKS):
        if ORD == "tm": order = [(ti, m) for ti in range(nt) for m in range(4)]
        elif ORD == "mt": order = [(ti, m) for m in range(4) for ti in range(nt)]
        elif ORD == "snake":
            order = [(ti, (m if (ti % 2 == 0 or i == 0) else 3-m)) for ti in range(nt) for m in range(4)]
        elif ORD == "mt2":
            order = [(ti, 2*mh + mm) for mh in range(2) for ti in range(nt) for mm in range(2)]
        elif ORD == "msnake":
            order = [((ti if (m % 2 == 0) else nt-1-ti), m) for m in range(4) for ti in range(nt)]
        seenW = set(); seenX = set()
        lastW = {}
        for k, (ti, m) in enumerate(order): lastW[ti] = k
        for k, (ti, m) in enumerate(order):
            t = tiles[ti]
            n = n0 + i*nt + ti
            slot = n % RING
            c = accr(t, 3) if i == 0 else accr(t, m)
            mf = It('M', f"v_mfma_f32_16x16x32_bf16 {accr(t,m)}, {WR(slot)}, {XF(i%2,m)}, {c}")
            gaps.append(dict(mf=mf, s=[], mem=[], v=[], i=i, ti=ti, m=m, n=n, wait=[],
                             fW=ti not in seenW, fX=m not in seenX, lW=lastW[ti] == k))
            seenW.add(ti); seenX.add(m)
    def gidx(i, ti, m): return (i*nt + ti)*4 + m
    NG = len(gaps)
    head_needs = []
    for gi, g in enumerate(gaps):
        needs = []
        if g['fW']:
            Fn = l*FR_LAYER + g['n']
            if not (HALFW and Fn >= RING and (g['n'] - RING) % 2 == 1 and ((g['n']-RING) % FR_LAYER) % 2 == 1):
                needs.append(('W', Fn))
            if g['i'] == 0:
                needs.append(('BI', l, tiles[g['ti']]))
        if g['fX']:
            if ORD == "tm" or "xwaitall" in OPT:
                if g['ti'] == 0 and g['m'] == 0 or (ORD != "tm" and not any(x['i'] == g['i'] for x in gaps[max(0, gi-1):gi])):
                    needs += [('X', l, name, g['i'], mm) for mm in range(4)]
            else:
                needs.append(('X', l, name, g['i'], g['m']))
        if needs:
            if gi == 0: head_needs = needs
            else: gaps[gi-1]['wait'] += needs
    for g in gaps:
        if g['lW']:
            n = g['n']; Fabs = l*FR_LAYER + n + RING
            if Fabs < 3*FR_LAYER:
                it, skipped = wload(n, Fabs)
                if not skipped: g['mem'].append(it)
                if n % 8 == 7 or n == FR_LAYER-1:
                    inc = 8192 if n % 8 == 7 else (n % 8 + 1)*1024
                    if "samew" in OPT and n == 311: inc -= WP_LAYER
                    g['v'].append(It('V', f"v_add_u32 v{V_W}, {inc}, v{V_W}"))
    last_wgap = max([gi for gi, g in enumerate(gaps) if any(x.k == 'G' for x in g['mem'])], default=-1)
    xg = [(0, 0), (0, 1), (0, 2), (1, 0)]
    for i in range(NKS):
        if i+1 < NKS: nl, nn, ni = l, name, i+1
        else:
            if isA: nl, nn, ni = l, 'B', 0
            else:
                if last: continue
                nl, nn, ni = l+1, 'A', 0
        for m in range(4):
            base, off = xaddr(ni, m)
            ti, mm = xg[m]
            if "noX" in OPT and not first and (m % 2 == 1 or "noXall" in OPT):
                NOTEXT.add(('X', nl, nn, ni, m)); continue
            gaps[gidx(i, ti, mm)]['mem'].append(
                It('D', f"ds_read_b128 {XF((i+1)%2,m)}, v{base} offset:{off}", id=('X', nl, nn, ni, m)))
    def add_barrier(gi, needs):
        gaps[gi]['wait'] += needs
        gaps[gi]['bar'] = True
    def endg(i): return gidx(i, nt-1, 3)
    groups = []; pre = []; post = []; post_earliest = 0; wr_earliest = 0; span = (0, NG-1)
    if isA:
        pre = [It('V', f"v_add_u32 v{V_BI}, {D*4}, v{V_BI}"), It('V', f"v_add_u32 v{V_BIH}, {D*4}, v{V_BIH}")]
        for tb, t in enumerate([8, 9, 10, 11]):
            p, h = t//2, t % 2
            post.append(It('D', f"ds_read_b128 {accr(t,3)}, v{V_BI} offset:{p*128+h*16}", id=('BI', l, t)))
        post.append(It('D', f"ds_read_b128 {accr(12,3)}, v{V_BIH}", id=('BI', l, 12)))
        post_earliest = gidx(18, 0, 0)
        if first:
            for i, lst in X0SCHED.items():
                for k, (p, m) in enumerate(lst):
                    s_, g_ = x0dma(p, m)
                    assert len(lst) <= 2
                    gi = gidx(i, 2 + 2*k, 1)
                    gaps[gi-1]['s'].append(s_)
                    gaps[gi]['mem'].append(g_)
            used = {}
            for k, (i, loads, gm) in enumerate(SITES):
                gi = gidx(i, 2 + 2*used.get(i, 0), 1); used[i] = used.get(i, 0) + 1
                its = []
                if group is None:
                    its.append(It('S', f"s_bitcmp1_b32 s{S_SM}, {k}"))
                    its.append(It('S', f"s_cbranch_scc0 Lsite{k}"))
                if group is None or (gm >> group) & 1:
                    for (p, m) in loads:
                        s_, g_ = x0dma(p, m)
                        its += [s_, It('S', "s_nop 0"), g_]
                if group is None: its.append(It('S', f"Lsite{k}:"))
                for it_ in its: it_.site = True
                gaps[gi]['site'] = its
            assert PRO_W % 8 == 0 or PRO_W == RING
            slots = [gidx(0, ti, mm) for ti in range(8) for mm in (1, 2)] + [gidx(1, ti, mm) for ti in range(8) for mm in (1, 2)]
            slots = [x for x in slots if not gaps[x]['mem'] and 'site' not in gaps[x]]
            for k, F in enumerate(range(PRO_W, RING)):
                gi = slots[k]
                gaps[gi]['mem'].append(It('G', f"global_load_dwordx4 {WR(F)}, v32, s[{S_WB}:{S_WB+1}] offset:{(F%8)*1024-4096}{WFL}", id=('W', F)))
                if F % 8 == 7: gaps[gi]['v'].append(It('V', "v_add_u32 v32, 8192, v32"))
            gaps[endg(6)]['wait'] += [('XL', 1, k) for k in range(8)]
            add_barrier(endg(7), [])
            gaps[endg(14)]['wait'] += [('XL', 2, k) for k in range(8)]
            add_barrier(endg(16), [('XL', 'S', 0), ('XL', 'S', 1)])
            cp_at = {0: 1, 1: 4, 2: 8, 3: 12, 4: 16, 5: 17}
            for p, i in cp_at.items():
                for m in range(4):
                    b = X0(p, m)
                    gaps[gidx(i, 4+m, 0)]['mem'].append(
                        It('D', f"ds_read_b128 a[{b}:{b+3}], v{VO(p)} offset:{xoff(p,m)}", id=('X0', p, m)))
            for m in range(4):
                b = X0H(m)
                gaps[gidx(18, 4+m, 0)]['mem'].append(It('D', f"ds_read_b64 a[{b}:{b+1}], v{V_RH} offset:{m*2048}", id=('X0H', m)))
            post_earliest = gidx(19, 0, 0)
        else:
            curB = [('WR', l-1, 'B', p, m) for p in (4, 5) for m in range(4)] + [('WR', l-1, 'H', 0, m) for m in range(4)]
            add_barrier(endg(16), curB)
            groups = epi_stream(l-1, 'B', 'lds')
            wr_earliest = 0
            span = (0, endg(14))
    else:
        dest = 'glb' if last else 'lds'
        groups = epi_stream(l, 'A', dest)
        if not last:
            g_bm = endg(14)
            add_barrier(g_bm, [('X', l, name, 15, mm) for mm in range(4)])
            wr_earliest = g_bm + 1
            span = (0, endg(int(optval("pbspan", 22))))
            add_barrier(endg(25), [('WR', l, 'A', p, m) for p in range(4) for m in range(4)])
            for t in range(8):
                p, h = t//2, t % 2
                post.append(It('D', f"ds_read_b128 {accr(t,3)}, v{V_BI} offset:{D*4+p*128+h*16}", id=('BI', l+1, t)))
            post_earliest = gidx(25, 0, 0)
            if l == 0:
                gaps[g_bm]['wait'] += [('X0', p, m) for p in range(6) for m in range(4)] + [('X0H', m) for m in range(4)]
        else:
            wr_earliest = last_wgap + 1 if "stlate" in OPT else 0
            span = (0, endg(int(optval("pblspan", 24))))
    tag = 'PA0' if first else ('PBL' if last else 'P'+name)
    if optval("pdiag", "") == tag:
        lst = [int(x) for x in optval("plist", "2,5,8,11,14,17,20,22,24,25").split(",")]
        for k, i in enumerate(lst):
            for x in stamp_raw(2+k): gaps[endg(i)]['s'].append(It('S', x))
    ng = len(groups)
    g0, g1 = span
    lin = [(it, 0) for it in pre]
    if groups: lin.append((groups[0][0], g0))
    pend_st = []
    for k, (rd, body, wr) in enumerate(groups):
        e = g0 + (g1-g0)*k//ng
        if k+1 < ng: lin.append((groups[k+1][0], e))
        for it in body:
            if "noEpi" in OPT and not it.needs: continue
            lin.append((it, e))
        if pend_st and wr is None:
            for w_ in pend_st: lin.append((w_, e, 'w'))
            pend_st = []
        if isinstance(wr, dict):
            for w_ in wr['dw']: lin.append((w_, e, 'w'))
            for w_ in wr['rd']: lin.append((w_, e))
            pend_st = wr['st']
        elif wr is not None: lin.append((wr, e, 'w'))
    for w_ in pend_st: lin.append((w_, min(g1, e + 24), 'w'))
    qi = 0
    delayed = []
    post_q = list(post)
    for gi, g in enumerate(gaps):
        def nvec(): return len(g['mem']) + len(g['v']) + (2 if 'site' in g else 0)
        heavy = False
        if delayed and gi >= wr_earliest and nvec() == 0 and not g.get('bar'):
            it_ = delayed.pop(0)
            g['mem'].append(it_); heavy = True
            if it_.needs: g['wait'] += it_.needs
        if heavy: continue
        while qi < len(lin) and nvec() < 2:
            e = lin[qi]; it = e[0]
            if gi < e[1]: break
            if len(e) == 3:
                if gi < wr_earliest or delayed:
                    delayed.append(it); qi += 1; continue
                if nvec() == 0 and not g.get('bar'):
                    g['mem'].append(it); qi += 1
                    if it.needs: g['wait'] += it.needs
                break
            if it.k == 'D':
                if len(g['v']) == 0:
                    g['mem'].append(it); qi += 1; continue
                break
            if it.needs: g['wait'] += it.needs
            g['v'].append(it); qi += 1
        if qi >= len(lin) and not delayed and post_q and gi >= post_earliest and len(g['v']) == 0 and nvec() < 2 and not g.get('bar'):
            g['mem'].append(post_q.pop(0))
    assert qi == len(lin), (name, l, "stream not fully placed", qi, len(lin))
    assert not delayed and not post_q, (name, l, len(delayed), len(post_q))
    return gaps, head_needs

def gaps_to_items(gaps, tag):
    items = []
    for gi, g in enumerate(gaps):
        items.append(g['mf'])
        if g['wait'] or g.get('bar'):
            items.append(It('W', needs=list(g['wait']), key=(tag, gi)))
        if g.get('bar'): items.append(It('B', "s_barrier"))
        items += g['s']
        items += g.get('site', [])
        items += g['mem']
        items += g['v']
    return items

class Resolver:
    def __init__(s):
        s.vm = []; s.lg = []; s.vmdone = -1; s.lgdone = -1
        s.pos = {}
        s.waits = {}
    def run(s, items):
        for it in items:
            if it.k in VM:
                s.pos[it.id] = ('vm', len(s.vm)); s.vm.append(it.id)
            elif it.k in LG:
                s.pos[it.id] = ('lg', len(s.lg)); s.lg.append(it.id)
            elif it.k == 'W':
                nv = nl = None
                for nd in it.needs:
                    if nd in NOTEXT: continue
                    assert nd in s.pos, nd
                    c, p = s.pos[nd]
                    if c == 'vm':
                        if p > s.vmdone:
                            n = len(s.vm)-1-p; nv = n if nv is None else min(nv, n)
                    else:
                        if p > s.lgdone:
                            n = len(s.lg)-1-p; nl = n if nl is None else min(nl, n)
                if nv is not None: nv = min(nv, 63); s.vmdone = max(s.vmdone, len(s.vm)-1-nv)
                if nl is not None: nl = min(nl, 15); s.lgdone = max(s.lgdone, len(s.lg)-1-nl)
                old = s.waits.get(it.key, [None, None])
                s.waits[it.key] = [nv if old[0] is None else (old[0] if nv is None else min(old[0], nv)),
                                   nl if old[1] is None else (old[1] if nl is None else min(old[1], nl))]
    def text(s, items):
        out = []
        for it in items:
            if it.k == 'W':
                nv, nl = s.waits[it.key]
                parts = []
                if nv is not None: parts.append(f"vmcnt({nv})")
                if nl is not None: parts.append(f"lgkmcnt({nl})")
                if parts: out.append("s_waitcnt " + " ".join(parts))
            elif it.t is not None:
                out.append(it.t)
        return out

PDIAG = optval("pdiag", "") != ""
def stamp_raw(idx):
    return ["s_memtime s[58:59]", "s_memrealtime s[56:57]", "s_waitcnt lgkmcnt(0)", f"s_mov_b32 s{60+idx}, s58", f"s_mov_b32 s{80+idx}, s56"]
def stamp_txt(idx):
    if not DIAG: return []
    if PDIAG:
        i0 = idx[0] if isinstance(idx, tuple) else idx
        if 2 <= i0 <= 11:
            return []
    o = ["s_memtime s[58:59]", "s_memrealtime s[56:57]", "s_waitcnt lgkmcnt(0)"]
    if isinstance(idx, tuple):
        for L in range(3):
            o += [f"s_cmp_eq_u32 s{S_L}, {L}", f"s_cselect_b32 s{60+idx[0]+L}, s58, s{60+idx[0]+L}",
                  f"s_cselect_b32 s{80+idx[0]+L}, s56, s{80+idx[0]+L}"]
    else:
        o += [f"s_mov_b32 s{60+idx}, s58", f"s_mov_b32 s{80+idx}, s56"]
    return o

def table():
    ent = []
    for Pk in range(26):
        for Bk in range(13):
            for k in range(4):
                a, h = k >> 1, k & 1
                Pn = 2*Bk + a
                if Pn < 24: w, p = Pn//6, Pn % 6; t = 2*p + h
                else: w = 2*(Pn-24) + h; t = 12
                i = inst_of(w, Pk)
                if t < 8: pos = i*8 + t
                else: pos = 208 + i*5 + (t-8)
                ent.append(w*WP_WAVE + pos*1024)
    return ent

KNAME = "standalone__dcn_v2_cross__recsys_kernel"
def wpf_items(start, n, vd, tag):
    I = []
    I.append(It('S', f"s_mul_i32 s16, s35, {n*128}"))
    I.append(It('S', f"s_add_u32 s16, s16, {start*128}"))
    I.append(It('V', f"v_lshl_add_u32 v35, v41, 7, s16"))
    if n < 64: I.append(It('S', f"s_mov_b64 exec, {hex((1<<n)-1)}"))
    I.append(It('G', f"global_load_dword v21, v35, s[{S_WB}:{S_WB+1}]", id=('PF', tag)))
    if n < 64: I.append(It('S', "s_mov_b64 exec, -1"))
    return I
def pro_items():
    I = []
    def o(s):
        for x in s.split("\n"): I.append(It('S', x))
    def stamp(i):
        for x in stamp_txt(i): o(x)
    o(f".globl {KNAME}\n.p2align 8\n.type {KNAME},@function\n{KNAME}:")
    o("s_cmp_ge_u32 s2, 256")
    o("s_cbranch_scc1 Lend")
    if DIAG:
        o("s_memrealtime s[56:57]\ns_memtime s[58:59]\ns_waitcnt lgkmcnt(0)\ns_mov_b32 s98, s56\ns_mov_b32 s60, s58\ns_mov_b32 s80, s56")
    o("s_load_dwordx4 s[4:7], s[0:1], 0")
    o("s_load_dwordx4 s[8:11], s[0:1], 16")
    o("s_load_dwordx2 s[14:15], s[0:1], 40")
    o("v_lshrrev_b32 v40, 6, v0")
    o("v_and_b32 v41, 63, v0")
    o(f"v_readfirstlane_b32 s{S_W}, v40")
    o(f"v_lshlrev_b32 v{V_L16}, 4, v41")
    CPF = optval("cpf", "1")
    if "nocodepf" not in OPT and CPF == "1":
        o("s_lshr_b32 s16, s2, 3\ns_and_b32 s16, s16, 31\ns_lshl_b32 s16, s16, 2")
        o(f"s_add_u32 s16, s16, s{S_W}\ns_lshl_b32 s16, s16, 9")
        o("s_min_u32 s16, s16, Lcode_end-Lpa0")
        o("s_getpc_b64 s[32:33]\nLpc2:\ns_add_u32 s32, s32, Lpa0-Lpc2\ns_addc_u32 s33, s33, 0")
        o(f"v_lshrrev_b32 v42, 1, v{V_L16}\nv_add_u32 v42, s16, v42")
        I.append(It('G', "global_load_dwordx2 v[22:23], v42, s[32:33]", id=('CP',)))
    elif "nocodepf" not in OPT:
        nk = int(CPF)
        o("s_lshr_b32 s16, s2, 3\ns_lshl_b32 s16, s16, 2")
        o(f"s_add_u32 s16, s16, s{S_W}\ns_and_b32 s17, s2, 7\ns_mul_i32 s17, s17, 7\ns_add_u32 s16, s16, s17")
        o(f"s_mul_i32 s16, s16, {nk-1}")
        o("s_getpc_b64 s[32:33]\nLpc2:\ns_add_u32 s32, s32, Lpa0-Lpc2\ns_addc_u32 s33, s33, 0")
        for k in range(nk-1):
            o(f"s_add_u32 s17, s16, {k}\ns_mul_hi_u32 s18, s17, {(2**32+51)//52}\ns_mul_i32 s18, s18, 52\ns_sub_u32 s17, s17, s18\ns_lshl_b32 s17, s17, 10")
            o("s_min_u32 s17, s17, Lcode_end-Lpa0")
            o(f"v_add_u32 v42, s17, v{V_L16}")
            I.append(It('G', "global_load_dwordx4 v[20:23], v42, s[32:33]", id=('CP', k)))
    o("v_and_b32 v42, 15, v41")
    o("v_lshrrev_b32 v43, 4, v41")
    o("v_lshlrev_b32 v40, 2, v0")
    o(f"v_lshrrev_b32 v28, 3, v41\nv_and_b32 v29, 7, v41\nv_xor_b32 v29, v29, v28")
    o(f"v_mul_u32_u24 v{V_D[0]}, {ROWB}, v28\nv_lshl_add_u32 v{V_D[0]}, v29, 4, v{V_D[0]}\nv_add_u32 v{V_D[1]}, {8*ROWB}, v{V_D[0]}")
    o(f"s_mul_i32 s{S_LW}, s{S_W}, {6*4096}")
    o(f"s_mul_i32 s16, s2, {64*ROWB}\ns_mul_i32 s17, s{S_W}, 384\ns_add_u32 s22, s16, s17")
    o(f"s_lshr_b32 s18, s{S_W}, 1\ns_and_b32 s19, s{S_W}, 1")
    o(f"s_mul_i32 s23, s{S_W}, {WP_WAVE}")
    o(f"v_add_u32 v31, 4096, v{V_L16}")
    o("s_waitcnt lgkmcnt(0)")
    stamp(15)
    o(f"s_mov_b32 s28, s8\ns_mov_b32 s29, s9\ns_mov_b32 s30, {3*ROWB}\ns_mov_b32 s31, 0x20000")
    o(f"s_add_u32 s{S_X0}, s4, s22\ns_addc_u32 s{S_X0+1}, s5, 0")
    for m in range(1, 4):
        o(f"s_add_u32 s{S_X0+2*m}, s{S_X0}, {m*16*ROWB}\ns_addc_u32 s{S_X0+2*m+1}, s{S_X0+1}, 0")
    o(f"s_add_u32 s{S_WB}, s14, s23\ns_addc_u32 s{S_WB+1}, s15, 0")
    o("s_lshr_b32 s35, s2, 3\ns_and_b32 s35, s35, 31")
    def dma(q):
        for k in range(8):
            s_, g_ = x0dma(q, k)
            I.append(s_); I.append(It('S', "s_nop 0")); I.append(g_)
    sdone = []
    def split_setup():
        if sdone: return
        sdone.append(1)
        o(f"s_mul_i32 s16, s2, {64*ROWB}\ns_mul_i32 s17, s{S_W}, {16*ROWB}\ns_add_u32 s16, s16, s17\ns_add_u32 s16, s16, {24*64}")
        o(f"s_add_u32 s{S_XS}, s4, s16\ns_addc_u32 s{S_XS+1}, s5, 0")
        o(f"s_add_u32 s{S_XS+2}, s10, s16\ns_addc_u32 s{S_XS+3}, s11, 0")
        o(f"s_lshl_b32 s16, s{S_W}, 11\ns_add_u32 s{S_LS}, s16, {24*4096}")
    wdone = 0
    for tok in PRO_ORDER:
        if tok == 'B':
            for i in range(5):
                if i < 4: I.append(It('G', f"buffer_load_dword v{16+i}, v40, s[28:31], 0 offen offset:{i*1024}", id=('BL', i)))
                else:
                    o("v_add_u32 v34, 4096, v40")
                    I.append(It('G', f"buffer_load_dword v{16+i}, v34, s[28:31], 0 offen", id=('BL', i)))
        elif tok == 'S':
            split_setup()
            for mm in range(2):
                s_, g_ = x0dma('S', mm)
                I.append(s_); I.append(It('S', "s_nop 0")); I.append(g_)
        elif tok[0] == 'X': dma(int(tok[1:]))
        elif tok[0] == 'W':
            n = int(tok[1:])
            for F in range(wdone, n):
                I.append(It('G', f"global_load_dwordx4 {WR(F)}, v31, s[{S_WB}:{S_WB+1}] offset:{(F%8)*1024-4096}{WFL}", id=('W', F)))
                if F % 8 == 7: o("v_add_u32 v31, 8192, v31")
            wdone = n
        elif tok[0] == 'F':
            st_, n_ = tok[1:].split("_")
            I.extend(wpf_items(int(st_), int(n_), 38, tok))
        if tok == 'X0': stamp(16)
        if tok[0] == 'W': stamp(17)
    assert wdone == PRO_W
    if PRO_W < RING: o(f"v_add_u32 v32, {4096 + PRO_W*1024}, v{V_L16}")
    stamp(12)
    o(f"s_mov_b32 s{S_MASK}, 0xffff0000")
    o("v_and_b32 v28, 7, v42\nv_lshrrev_b32 v29, 3, v42\nv_xor_b32 v30, v43, v28")
    o("v_lshlrev_b32 v30, 4, v30\nv_lshl_add_u32 v30, v28, 7, v30\nv_lshl_add_u32 v30, v29, 10, v30")
    o("v_xor_b32 v33, 64, v30")
    for d in range(4):
        o(f"s_add_u32 s16, s{S_W}, {d}\ns_and_b32 s16, s16, 3\ns_mul_i32 s16, s16, {6*4096}")
        o(f"v_add_u32 v{V_B[0][d]}, s16, v30\nv_add_u32 v{V_B[1][d]}, s16, v33")
    o(f"v_add_u32 v{V_SP[0]}, {24*4096}, v30\nv_add_u32 v{V_SP[1]}, {24*4096}, v33")
    o(f"s_lshl_b32 s16, s18, 6\nv_xor_b32 v{V_RH}, s16, v{V_SP[0]}\ns_lshl_b32 s17, s19, 3\nv_add_u32 v{V_RH}, s17, v{V_RH}")
    o(f"s_lshl_b32 s16, s{S_W}, 11\ns_add_u32 s17, s16, {LDS_ST}")
    o(f"v_add_u32 v{V_ST[0]}, s17, v30\nv_add_u32 v{V_ST[1]}, s17, v33\nv_add_u32 v{V_STL}, s17, v{V_L16}")
    o(f"s_add_u32 s17, s16, {LDS_STH}\nv_add_u32 v{V_HL}, s17, v{V_L16}")
    o("v_lshlrev_b32 v28, 5, v43")
    o(f"s_mul_i32 s16, s{S_W}, 768\ns_add_u32 s16, s16, {LDS_BIAS-D*4}")
    o(f"v_add_u32 v{V_BI}, s16, v28")
    o(f"s_lshl_b32 s16, s18, 7\ns_lshl_b32 s17, s19, 4\ns_add_u32 s16, s16, s17\ns_add_u32 s16, s16, {LDS_BIAS-D*4+24*128}")
    o(f"v_add_u32 v{V_BIH}, s16, v28")
    o(f"v_add_u32 v{V_W}, {4096 + RING*1024}, v{V_L16}")
    o(f"s_mov_b32 s{S_L}, 0")
    if STAG:
        o(f"s_lshr_b32 s16, s2, {optval('gsh', 3)}\ns_and_b32 s16, s16, 3")
        for g in range(4):
            mask = sum(1 << k for k, (i, loads, gm) in enumerate(SITES) if (gm >> g) & 1)
            if g == 0: o(f"s_mov_b32 s{S_SM}, {mask}")
            else: o(f"s_cmp_eq_u32 s16, {g}\ns_cselect_b32 s{S_SM}, {mask}, s{S_SM}")
    o(f"s_add_u32 s{S_OUT}, s10, s22\ns_addc_u32 s{S_OUT+1}, s11, 0")
    for m in range(1, 4):
        o(f"s_add_u32 s{S_OUT+2*m}, s{S_OUT}, {m*16*ROWB}\ns_addc_u32 s{S_OUT+2*m+1}, s{S_OUT+1}, 0")
    split_setup()
    o(f"v_lshlrev_b32 v40, 1, v40\nv_add_u32 v40, {LDS_BIAS}, v40")
    I.append(It('W', needs=[('BL', 4)], key=('PRO', 0)))
    stamp(13)
    for i in range(5):
        o(f"v_lshlrev_b32 v{28+2*(i%2)}, 16, v{16+i}\nv_and_b32 v{29+2*(i%2)}, s{S_MASK}, v{16+i}")
        I.append(It('DW', f"ds_write_b64 v40, v[{28+2*(i%2)}:{29+2*(i%2)}] offset:{i*2048}", id=('BW', i)))
    I.append(It('W', needs=[('BW', 4)] + [('XL', 0, k) for k in range(8)], key=('PRO', 1)))
    stamp(14)
    I.append(It('B', "s_barrier"))
    for m in range(4):
        base, off = xaddr(0, m)
        I.append(It('D', f"ds_read_b128 {XF(0,m)}, v{base} offset:{off}", id=('X', 0, 'A', 0, m)))
    for t in range(8):
        p, h = t//2, t % 2
        I.append(It('D', f"ds_read_b128 {accr(t,3)}, v{V_BI} offset:{D*4+p*128+h*16}", id=('BI', 0, t)))
    return I

def pack_kernel(o):
    name = "dcn_pack_kernel"
    o(f".globl {name}\n.p2align 8\n.type {name},@function\n{name}:")
    o("s_load_dwordx2 s[6:7], s[0:1], 8")
    o("s_load_dwordx2 s[14:15], s[0:1], 40")
    if "dbgout" in OPT: o("s_memrealtime s[50:51]")
    o("v_lshrrev_b32 v40, 6, v0\nv_and_b32 v41, 63, v0")
    o("v_readfirstlane_b32 s3, v40")
    o("v_lshlrev_b32 v1, 4, v41")
    o("v_lshrrev_b32 v43, 4, v41")
    o("s_getpc_b64 s[34:35]\nLpcp:\ns_add_u32 s34, s34, Ltable-Lpcp\ns_addc_u32 s35, s35, 0")
    PF = int(optval("pf", 0))
    if PF:
        o("s_load_dwordx2 s[4:5], s[0:1], 0")
        o("s_cmp_ge_u32 s2, 256\ns_cbranch_scc1 Lpk_end")
        o(f"v_mul_u32_u24 v44, {ROWB}, v41")
        o(f"s_mul_i32 s44, s2, {64*ROWB}\ns_mul_i32 s45, s3, 384\ns_add_u32 s44, s44, s45")
    o("s_lshl_b32 s40, s2, 2\ns_add_u32 s40, s40, s3")
    if PF:
        o("s_min_u32 s40, s40, 1013")
    else:
        o("s_cmp_ge_u32 s40, 1014\ns_cbranch_scc1 Lpk_end")
    o(f"s_mov_b32 s41, {(2**32+337)//338}\ns_mul_hi_u32 s42, s40, s41")
    o("s_mul_i32 s41, s42, 338\ns_sub_u32 s40, s40, s41")
    o(f"s_mov_b32 s41, {(2**32+12)//13}\ns_mul_hi_u32 s43, s40, s41")
    o("s_mul_i32 s41, s43, 13\ns_sub_u32 s41, s40, s41")
    o("s_lshl_b32 s24, s40, 4")
    o(f"s_load_dwordx4 s[16:19], s[34:35], s24")
    o(f"s_mul_i32 s46, s42, {WP_LAYER}")
    o(f"s_mul_i32 s40, s42, {WL}\ns_mul_i32 s43, s43, {32*ROWB}\ns_add_u32 s40, s40, s43\ns_lshl_b32 s41, s41, 7\ns_add_u32 s40, s40, s41")
    o("v_lshrrev_b32 v40, 3, v41\nv_and_b32 v42, 7, v41")
    o(f"v_mul_u32_u24 v30, {ROWB}, v40\nv_lshl_add_u32 v30, v42, 4, v30")
    for q in range(1, 4):
        o(f"v_add_u32 v{30+q}, {q*8*ROWB}, v30")
    o("v_bfe_u32 v40, v41, 2, 2\nv_and_b32 v42, 3, v41")
    o("v_lshl_add_u32 v40, v43, 3, v40")
    o("v_lshlrev_b32 v40, 7, v40\nv_lshl_add_u32 v34, v42, 4, v40")
    o("s_lshl_b32 s39, s3, 12")
    o("v_add_u32 v34, s39, v34")
    o("s_waitcnt lgkmcnt(0)")
    o("s_add_u32 s22, s6, s40\ns_addc_u32 s23, s7, 0")
    for q in range(4):
        o(f"s_add_u32 m0, s39, {q*1024}\ns_nop 0")
        o(f"global_load_lds_dwordx4 v{30+q}, s[22:23]")
    npf = 0
    if PF:
        o("s_add_u32 s4, s4, s44\ns_addc_u32 s5, s5, 0")
        for c in range(min(PF, 3)):
            o(f"global_load_dword v{45+c}, v44, s[4:5] offset:{c*128}"); npf += 1
        if PF >= 4:
            o(f"s_mul_i32 s45, s3, 384\ns_sub_u32 s45, 1536, s45\nv_add_u32 v43, s45, v44")
            o(f"global_load_dword v48, v43, s[4:5]"); npf += 1
    for k in range(4):
        o(f"s_add_u32 s40, s{16+k}, s46")
        o(f"v_add_u32 v{35+k}, s40, v1")
    o(f"s_waitcnt vmcnt({npf})")
    for k in range(4):
        a, h = k >> 1, k & 1
        b = 8 + k*4
        off = 64*a + 8*h
        o(f"ds_read_b64_tr_b16 v[{b}:{b+1}], v34 offset:{off}")
        o(f"ds_read_b64_tr_b16 v[{b+2}:{b+3}], v34 offset:{off+512}")
    for k in range(4):
        b = 8 + k*4
        o(f"s_waitcnt lgkmcnt({2*(3-k)})")
        o(f"global_store_dwordx4 v{35+k}, v[{b}:{b+3}], s[14:15]" + {"": "", "sc1": " sc1", "sc01": " sc0 sc1", "nt": " nt"}[optval("pkst", "")])
    if "dbgout" in OPT:
        o("s_cmp_lg_u32 s2, 0\ns_cbranch_scc1 Lpk_end\nv_mov_b32 v40, 0x900000\nv_mov_b32 v41, s50\nglobal_store_dword v40, v41, s[14:15] sc1")
    o("Lpk_end:\ns_endpgm")

class Asm:
    def __init__(self): self.l = []
    def __call__(self, s):
        for x in s.split("\n"): self.l.append(x)
    def text(self): return "\n".join(self.l)

def e_items():
    groups = epi_stream(2, 'B', 'glb')
    items = [It('S', "s_nop 7")]
    items.append(groups[0][0])
    pend = []
    nW = [0]
    def W(needs):
        nW[0] += 1
        items.append(It('W', needs=needs, key=('E', nW[0])))
    for k, (rd, body, wr) in enumerate(groups):
        if k+1 < len(groups): items.append(groups[k+1][0])
        for it in body:
            if it.needs: W(it.needs)
            items.append(it)
        if pend and wr is None:
            for w_ in pend:
                W(w_.needs); items.append(w_)
            pend = []
        if isinstance(wr, dict):
            items.extend(wr['dw']); items.extend(wr['rd']); pend = wr['st']
        elif wr is not None: items.append(wr)
        if k == 5:
            W([('SWH', m) for m in range(4)])
            items.append(It('B', "s_barrier"))
            items.append(It('D', f"ds_read_b128 v[{acc(12,0)}:{acc(12,0)+3}], v{V_HL}", id=('SRH', 0)))
            items.append(It('D', f"ds_read_b128 v[{acc(12,1)}:{acc(12,1)+3}], v{V_HL} offset:1024", id=('SRH', 1)))
        if k == 7:
            for hh in range(2):
                W([('SRH', hh)])
                items.append(It('ST', f"global_store_dwordx4 v{V_D[hh]}, v[{acc(12,hh)}:{acc(12,hh)+3}], s[{S_XS+2}:{S_XS+3}]{STFLAG}", id=('WRH', hh)))
    for w_ in pend:
        W(w_.needs); items.append(w_)
    return items

def verify(seq):
    idx = 0; wr = {}; bars = []; xr = []; waitpos = {}; issued = {}
    cps = []
    for bn, items in seq:
        for it in items:
            idx += 1
            if it.k == 'B': bars.append(idx)
            if it.k == 'DW' and it.id[0] == 'WR': wr[it.id] = idx
            if it.k == 'D' and it.id[0] == 'X': xr.append((idx, it.id))
            if it.k == 'D' and it.id[0] in ('X0', 'X0H'): cps.append((idx, it.id))
            if it.k == 'W':
                for nd in it.needs:
                    if nd not in waitpos: waitpos[nd] = idx
    def bar_between(a, b):
        j = bisect.bisect(bars, a)
        return j < len(bars) and bars[j] < b
    for ridx, (_, l, nm, i, m) in xr:
        k, a, b = inst_src(i)
        if l == 0:
            if k == 'd':
                w = max(waitpos[('XL', b >> 1, 2*m)], waitpos[('XL', b >> 1, 2*m+1)])
                assert w < ridx, ("x0 RAW own", nm, i, m)
                if a != 0: assert bar_between(w, ridx), ("x0 RAW barrier", nm, i, m)
            else:
                w = max(waitpos[('XL', 'S', 0)], waitpos[('XL', 'S', 1)])
                assert bar_between(w, ridx), ("x0 RAW barrier S", nm, i, m)
            continue
        if k == 'd':
            part = 'A' if b < 4 else 'B'
            wid = ('WR', l-1, part, b, m)
            own = (a == 0)
        else:
            wid = ('WR', l-1, 'H', 0, m); own = False
        assert wid in wr, (wid,)
        w = wr[wid]
        assert w < ridx, ("RAW own order", wid, l, nm, i, m)
        if not own:
            assert wid in waitpos and bar_between(waitpos[wid], ridx), ("RAW barrier", wid, l, nm, i, m)
    for cidx, cid in cps:
        if cid[0] == 'X0': assert max(waitpos[('XL', cid[1] >> 1, 2*cid[2])], waitpos[('XL', cid[1] >> 1, 2*cid[2]+1)]) < cidx, cid
        else: assert bar_between(max(waitpos[('XL', 'S', 0)], waitpos[('XL', 'S', 1)]), cidx), cid
    for wid, w in wr.items():
        _, lw, part, p, m = wid
        last = 0
        for ridx, (_, l, nm, i, mm) in xr:
            if l != lw or mm != m: continue
            k, a, b = inst_src(i)
            same = (k == 'd' and part in 'AB' and b == p) or (k == 's' and part == 'H')
            if same: last = max(last, waitpos[('X', l, nm, i, mm)])
        assert bar_between(last, w), ("WAR barrier", wid, last, w)
    print("verify ok: barriers", len(bars), file=sys.stderr)

def main():
    o = Asm()
    o(f"; @launch kernel=dcn_pack_kernel grid=({256 if int(optval('pf', 0)) else 254},1,1) block=(256,1,1) lds=16384")
    o(f"; @launch kernel={KNAME} grid=(256,1,1) block=(256,1,1) lds={LDS_TOTAL}")
    o('.amdgcn_target "amdgcn-amd-amdhsa--gfx950"')
    o(".text")
    pack_kernel(o)
    def blk(tag, name, l, last=False, first=False, group=None):
        gaps, head = build_pass(name, l, last, first, group)
        return [It('W', needs=head, key=(tag, 'head'))] + gaps_to_items(gaps, tag)
    def mkseq(group):
        seq = [('PRO', pro_items())]
        seq.append(('PA0', blk('PA0', 'A', 0, first=True, group=group)))
        seq.append(('PB', blk('PB', 'B', 0)))
        seq.append(('PA', blk('PA', 'A', 1)))
        seq.append(('PB', blk('PB', 'B', 1)))
        seq.append(('PA', blk('PA', 'A', 2)))
        seq.append(('PBL', blk('PBL', 'B', 2, True)))
        seq.append(('E', e_items()))
        return seq
    R = Resolver()
    for g in (range(NGRP) if STAG else [None]):
        Rg = Resolver(); Rg.waits = R.waits
        sq = mkseq(g)
        for bn, items in sq: Rg.run(items)
        if not NOTEXT and "noEpi" not in OPT: verify(sq)
    seq = mkseq(None)
    ref = [(it.k, it.t, it.id, it.key) for bn, items in seq for it in items if not it.site]
    for g in (range(NGRP) if STAG else []):
        cur = [(it.k, it.t, it.id, it.key) for bn, items in mkseq(g) for it in items if not it.site]
        assert cur == ref, "group-dependent placement"
    def emit(items):
        for s in R.text(items): o(s)
    emit(seq[0][1])
    for s in stamp_txt(1): o(s)
    o(".p2align 6")
    o("Lpa0:")
    emit(seq[1][1])
    o(".p2align 6")
    o("Lloop:")
    for s in stamp_txt((2,)): o(s)
    if DIAG and optval("pdiag", "") == 'PB':
        for s in stamp_raw(1): o(s)
    emit(seq[2][1])
    o(f"s_add_u32 s{S_L}, s{S_L}, 1")
    if DIAG and optval("pdiag", "") == 'PA':
        for s in stamp_raw(1): o(s)
    for s in stamp_txt((3,)): o(s)
    emit(seq[3][1])
    o(f"s_cmp_lt_u32 s{S_L}, 2")
    o("s_cbranch_scc1 Lloop")
    for s in stamp_txt(6): o(s)
    if DIAG and optval("pdiag", "") == 'PBL':
        for s in stamp_raw(1): o(s)
    emit(seq[6][1])
    for s in stamp_txt(7): o(s)
    emit(seq[7][1])
    if DIAG:
        for s in stamp_txt(8): o(s)
        o("s_waitcnt vmcnt(0)")
        for s in stamp_txt(9): o(s)
        o("s_memrealtime s[56:57]\ns_waitcnt lgkmcnt(0)\ns_mov_b32 s99, s56")
        for i in range(40):
            o(f"v_writelane_b32 v20, s{60+i}, {i}")
        o("v_and_b32 v21, 63, v0\nv_lshlrev_b32 v21, 2, v21")
        o(f"s_lshl_b32 s56, s2, 2\ns_add_u32 s56, s56, s{S_W}\ns_lshl_b32 s56, s56, 8\ns_add_u32 s56, s56, 0x800000")
        o("v_add_u32 v21, s56, v21")
        o("global_store_dword v21, v20, s[14:15]")
        if "dbgout" in OPT:
            o("s_load_dwordx2 s[12:13], s[0:1], 32")
            o("s_load_dword s58, s[14:15], 0x900000 glc" if False else "s_nop 0")
            o("v_mov_b32 v24, 0x900000\nglobal_load_dword v25, v24, s[14:15] sc1")
            o(f"s_cmp_lg_u32 s{S_W}, 0\ns_cbranch_scc1 Lend")
            o("s_waitcnt lgkmcnt(0) vmcnt(0)")
            o("s_mov_b64 exec, 1")
            o("v_mov_b32 v22, 52\nv_mov_b32 v23, s99\nglobal_atomic_umax v22, v23, s[12:13] sc1")
            o("v_mov_b32 v22, 56\ns_not_b32 s56, s80\nv_mov_b32 v23, s56\nglobal_atomic_umax v22, v23, s[12:13] sc1")
            o(f"s_cmp_lg_u32 s2, {optval('dbgwg', 0)}\ns_cbranch_scc1 Lend")
            o("v_mov_b32 v22, 0\nv_mov_b32 v23, s80\nglobal_store_dword v22, v23, s[12:13]")
            for k, sl in enumerate([15, 16, 17, 13, 14, 1, 2, 4, 3, 5, 6, 7]):
                o(f"s_sub_u32 s56, s{80+sl}, s80\nv_mov_b32 v22, {4+4*k}\nv_mov_b32 v23, s56\nglobal_store_dword v22, v23, s[12:13]")
            o("v_sub_u32 v23, s80, v25\nv_mov_b32 v22, 60\nglobal_store_dword v22, v23, s[12:13]")
    o("Lend:")
    o("s_endpgm")
    o("Lcode_end:")
    o(".p2align 6")
    o(".type Ltable,@object")
    o("Ltable:")
    tb = table()
    for i in range(0, len(tb), 8):
        o(".long " + ", ".join(str(x) for x in tb[i:i+8]))
    o(".size Ltable, .-Ltable")
    o('.section .rodata,"a"')
    for nm, nv, ns in ((KNAME, 512, 102), ("dcn_pack_kernel", 56, 64)):
        o(f""".p2align 6
.amdhsa_kernel {nm}
  .amdhsa_next_free_vgpr {nv}
  .amdhsa_next_free_sgpr {ns}
  .amdhsa_accum_offset {min(nv, 256)}
  .amdhsa_group_segment_fixed_size 0
  .amdhsa_kernarg_size 48
  .amdhsa_user_sgpr_count 2
  .amdhsa_user_sgpr_kernarg_segment_ptr 1
  .amdhsa_system_sgpr_workgroup_id_x 1
.end_amdhsa_kernel""")
    open(sys.argv[1], "w").write(o.text() + "\n")
main()
```
